```python
import torch

def _softmax(x, axis=-1):
    return torch.softmax(x, dim=axis)
def _gelu(x):
    return torch.nn.functional.gelu(x, approximate="tanh")
def _silu(x):
    return torch.nn.functional.silu(x)
def _sigmoid(x):
    return torch.sigmoid(x)
def _layernorm(x, axis=-1, eps=1e-5):
    m = x.mean(dim=axis, keepdim=True)
    v = x.var(dim=axis, keepdim=True, unbiased=False)
    return (x - m) / torch.sqrt(v + eps)
def _scatter_add(tgt, idx, src, axis=0):
    return tgt.clone().index_add_(axis, idx, src)
def _segment_sum(src, seg, n):
    out = torch.zeros((n,) + src.shape[1:], dtype=src.dtype)
    return out.index_add_(0, seg, src)
def _pad(x, pw):
    flat = tuple(v for pair in reversed(pw) for v in pair)
    return torch.nn.functional.pad(x, flat)

kernel_name = 'interleave_layers__linear_kernel_hedgehog__glu_gated_reglu__prompt'

def setup_inputs():

    _w = (lambda a: (lambda t: t.to(torch.bfloat16) if t.is_floating_point() else t)(torch.as_tensor(a)))
    def _A_setup():
        B, S, D, H = 1, 2048, 640, 32
        Dh = D // H
        return {
            "x": _w((lambda *s: torch.randn(*s, dtype=torch.bfloat16) * 0.05)(B, S, D)),
            "wqkv": _w((lambda *s: torch.randn(*s, dtype=torch.bfloat16) * 0.4)(D, 3 * D)),
            "w_phi": _w((lambda *s: torch.randn(*s, dtype=torch.bfloat16) * 0.4)(H, Dh, Dh) * (Dh ** -0.5)),
            "wo": _w((lambda *s: torch.randn(*s, dtype=torch.bfloat16) * 0.05)(D, D)),
        }
    _A_in = _A_setup()

    def _B_setup():
        B, S, D, F = 1, 2048, 640, 1536
        return {
            "x": _w((lambda *s: torch.randn(*s, dtype=torch.bfloat16) * 0.05)(B, S, D)),
            "W_gate": _w((lambda *s: torch.randn(*s, dtype=torch.bfloat16) * 1.6)(D, F) * (2.0 / D) ** 0.5),
            "W_up": _w((lambda *s: torch.randn(*s, dtype=torch.bfloat16) * 1.6)(D, F) * (2.0 / D) ** 0.5),
            "W_down": _w((lambda *s: torch.randn(*s, dtype=torch.bfloat16) * 1.6)(F, D) * (1.0 / F) ** 0.5),
        }
    _B_in = _B_setup()

    return {
        "A_x": _A_in["x"],
        "A_wqkv": _A_in["wqkv"],
        "A_w_phi": _A_in["w_phi"],
        "A_wo": _A_in["wo"],
        "B_x": _B_in["x"],
        "B_W_gate": _B_in["W_gate"],
        "B_W_up": _B_in["W_up"],
        "B_W_down": _B_in["W_down"],
    }

def reference(A_x, A_wqkv, A_w_phi, A_wo, B_x, B_W_gate, B_W_up, B_W_down):
    def _A_ref(x, wqkv, w_phi, wo):
        B, S, D = x.shape
        H = 32; Dh = D // H
        qkv = (lambda x, *d: x.permute(*d))((x @ wqkv).reshape(B, S, 3, H, Dh), 2, 0, 3, 1, 4)
        q, k, v = qkv[0], qkv[1], qkv[2]
        pq = torch.einsum("bhsd,hdf->bhsf", q, w_phi)
        pk = torch.einsum("bhsd,hdf->bhsf", k, w_phi)
        phi_q = torch.concatenate([_softmax(pq, axis=-1), _softmax(-pq, axis=-1)], axis=-1)
        phi_k = torch.concatenate([_softmax(pk, axis=-1), _softmax(-pk, axis=-1)], axis=-1)
        kv = torch.einsum("bhsf,bhsd->bhfd", phi_k, v)
        z  = torch.einsum("bhsf->bhf", phi_k)
        num = torch.einsum("bhqf,bhfd->bhqd", phi_q, kv)
        den = torch.einsum("bhqf,bhf->bhq", phi_q, z)[..., None] + 1e-6
        o = num / den
        return (lambda x, *d: x.permute(*d))(o, 0, 2, 1, 3).reshape(B, S, D) @ wo

    def _B_ref(x, W_gate, W_up, W_down):
        gate = torch.einsum("bsd,df->bsf", x, W_gate)
        up = torch.einsum("bsd,df->bsf", x, W_up)
        gate = gate * (lambda x, dt: x.to(dt))(gate > 0, gate.dtype)
        h = gate * up
        return torch.einsum("bsf,fd->bsd", h, W_down)

    x = A_x
    x = x + _A_ref(_layernorm(x, axis=-1), A_wqkv, A_w_phi, A_wo)
    x = x + _B_ref(_layernorm(x, axis=-1), B_W_gate, B_W_up, B_W_down)
    x = x + _A_ref(_layernorm(x, axis=-1), A_wqkv, A_w_phi, A_wo)
    x = x + _B_ref(_layernorm(x, axis=-1), B_W_gate, B_W_up, B_W_down)
    return x
```

```python
import re

_REG = re.compile(r'^(-?)(abs\()?([vas])(\d+|\[(\d+):(\d+)\])\)?$')

def regs_of(tok):
    tok = tok.strip()
    if tok in ("vcc",): return [("s", "vcc")]
    if tok in ("vcc_lo", "vcc_hi"): return [("s", "vcc")]
    if tok in ("exec", "exec_lo", "exec_hi"): return [("s", "exec")]
    if tok == "m0": return [("s", "m0")]
    m = _REG.match(tok)
    if not m: return []
    k = m.group(3)
    if m.group(5) is not None:
        return [(k, r) for r in range(int(m.group(5)), int(m.group(6)) + 1)]
    return [(k, int(m.group(4)))]

TRANS = ("v_exp_f32", "v_log_f32", "v_rcp_f32", "v_rsq_f32", "v_sqrt_f32", "v_sin_f32", "v_cos_f32")

class Ins:
    __slots__ = ("text", "op", "defs", "uses", "kind", "extra")

def parse(text):
    t = text.split(";")[0].strip()
    ins = Ins(); ins.text = text; ins.extra = {}
    sp = t.split(None, 1)
    op = sp[0]; ins.op = op
    rest = sp[1] if len(sp) > 1 else ""
    toks = [x.strip() for x in rest.split(",")] if rest else []
    mods = []
    if toks:
        full = rest
        full2 = re.sub(r'(op_sel|op_sel_hi|neg_lo|neg_hi):\[[^\]]*\]', '', full)
        toks = [x.strip() for x in full2.split(",")]
        last = toks[-1].split()
        if last:
            toks[-1] = last[0]; mods = last[1:]
    R = [regs_of(x) for x in toks]
    fl = lambda L: [r for x in L for r in x]
    defs, uses, kind = [], [], "other"
    if op.startswith("v_mfma"):
        kind = "mfma"; defs = R[0]; uses = fl(R[1:])
        ins.extra = dict(A=R[1], B=R[2], C=R[3], passes=8 if "32x32x16" in op else 4)
    elif op.startswith("v_"):
        kind = "valu"
        if op.startswith("v_cmp"):
            defs = R[0]; uses = fl(R[1:])
        elif op.startswith("v_readfirstlane") or op.startswith("v_readlane"):
            defs = R[0]; uses = fl(R[1:]); ins.extra["lane_read"] = True
        elif "permlane" in op and "swap" in op:
            defs = fl(R[:2]); uses = fl(R[:2]); ins.extra["permlane"] = True
        elif op.startswith(("v_add_co", "v_sub_co", "v_addc_co", "v_subb_co", "v_subrev_co")):
            defs = fl(R[:2]); uses = fl(R[2:])
        elif op.startswith(("v_fmac", "v_pk_fmac", "v_dot2c")):
            defs = R[0]; uses = fl(R)
        elif op.startswith("v_cndmask"):
            defs = R[0]; uses = fl(R[1:])
            if len(R) == 3: uses = uses + [("s", "vcc")]
        elif op == "v_nop":
            pass
        else:
            defs = R[0]; uses = fl(R[1:])
        if op.replace("_e32", "").replace("_e64", "") in TRANS: ins.extra["trans"] = True
        if "_dpp" in op: ins.extra["dpp"] = True
    elif op.startswith("ds_read"):
        kind = "ds"; defs = R[0]; uses = fl(R[1:])
    elif op.startswith("ds_write"):
        kind = "ds"; uses = fl(R)
    elif op.startswith("ds_"):
        kind = "ds"; defs = R[0]; uses = fl(R[1:])
    elif op.startswith("buffer_load"):
        kind = "vmem"
        if "lds" in mods:
            uses = fl(R) + [("s", "m0")]; ins.extra["dma"] = True
        else:
            defs = R[0]; uses = fl(R[1:])
            if "d16" in op: uses = uses + R[0]
    elif op.startswith("buffer_store"):
        kind = "vmem"; uses = fl(R)
        if op.endswith("x4") or op.endswith("x3"): ins.extra["wide_data"] = R[0]
    elif op.startswith("buffer_atomic"):
        kind = "vmem"; uses = fl(R)
        if "sc0" in mods: defs = R[0]
    elif op.startswith("global_load"):
        kind = "vmem"; defs = R[0]; uses = fl(R[1:])
    elif op.startswith("s_"):
        kind = "salu"
        if op in ("s_nop", "s_waitcnt", "s_barrier", "s_sleep", "s_endpgm", "s_setprio") or op.startswith(("s_cbranch", "s_branch")):
            pass
        elif op.startswith("s_cmp") or op.startswith("s_bitcmp"):
            uses = fl(R)
        elif "saveexec" in op:
            defs = R[0] + [("s", "exec")]; uses = fl(R[1:])
        else:
            defs = R[0]; uses = fl(R[1:])
    else:
        raise ValueError("unknown instruction: " + text)
    ins.defs, ins.uses, ins.kind = defs, uses, kind
    return ins

class Asm:
    def __init__(self):
        self.lines = []
        self.pos = 0
        self.h = {}
        self.snap = {}
        self.vm = []
        self.lg = []
        self.nops = 0
        self.ninstr = 0
    def comment(self, s): self.lines.append("; " + s)
    def raw(self, s): self.lines.append(s)
    def label(self, name):
        for ages in self.snap.pop(name, []):
            for k, (age, info) in ages.items():
                p = self.pos - age
                if k not in self.h or self.h[k][0] < p:
                    self.h[k] = (p, info)
        self.lines.append(name + ":")
    def _rec(self, key, info=None):
        self.h[key] = (self.pos, info)
    def _need(self, ins):
        need = 0
        def chk(key, ws):
            nonlocal need
            if key in self.h:
                if callable(ws): w = ws(self.h[key][1])
                else: w = ws
                d = self.pos - self.h[key][0]
                need = max(need, w - (d - 1))
        k = ins.kind
        MF = {4: 8, 8: 12}
        if k == "mfma":
            for r in ins.uses:
                if r[0] in "va": chk(("valu_w", r), 2)
            for r in ins.extra["A"] + ins.extra["B"]:
                chk(("mfma_w", r), lambda i: MF[i[0]])
            C = ins.extra["C"]
            for r in C:
                chk(("mfma_w", r), lambda i: 0 if (i[1] == tuple(C) and i[0] == ins.extra["passes"]) else {4: 6, 8: 10}[i[0]])
            if not C or tuple(C) != tuple(ins.defs):
                for r in ins.defs:
                    chk(("mfma_w", r), lambda i: 0 if i[0] == ins.extra["passes"] else MF[i[0]])
        elif k == "valu":
            for r in ins.uses + ins.defs:
                chk(("mfma_w", r), lambda i: MF[i[0]])
            for r in ins.defs:
                chk(("mfma_c", r), lambda i: {4: 3, 8: 7}[i])
                chk(("st_data", r), 2)
            for r in ins.uses:
                if not ins.extra.get("trans"): chk(("trans_w", r), 1)
                if r[0] == "s": chk(("valu_ws", r), 2)
                if ins.extra.get("lane_read") and r[0] == "v": chk(("valu_w", r), 1)
                if (ins.extra.get("permlane") or ins.extra.get("dpp")) and r[0] == "v": chk(("valu_w", r), 2)
        elif k in ("vmem", "ds"):
            for r in ins.uses + ins.defs:
                chk(("mfma_w", r), lambda i: MF[i[0]])
            for r in ins.defs:
                chk(("st_data", r), 1)
                chk(("mfma_c", r), lambda i: {4: 3, 8: 7}[i])
            for r in ins.uses:
                if r[0] == "s": chk(("valu_ws", r), 5)
                if r[0] == "v": chk(("trans_w", r), 1)
            if ins.extra.get("dma"): chk(("salu_w", ("s", "m0")), 1)
        elif k == "salu":
            for r in ins.uses:
                chk(("valu_ws", r), 1)
        return need
    def e(self, text, tag=None):
        for t in text.split("\n"):
            t = t.strip()
            if not t: continue
            if t.endswith(":"):
                self.label(t[:-1]); continue
            self._e1(t, tag)
    def _e1(self, text, tag):
        ins = parse(text)
        need = self._need(ins)
        while need > 0:
            n = min(need, 16)
            self.lines.append(f"\ts_nop {n-1}")
            self.pos += n; need -= n; self.nops += 1
        self.lines.append("\t" + text)
        self.ninstr += 1
        k = ins.kind
        if ins.op == "s_nop":
            self.pos += int(text.split()[1])
        if k == "mfma":
            for r in ins.defs: self._rec(("mfma_w", r), (ins.extra["passes"], tuple(ins.defs)))
            for r in ins.extra["C"]: self._rec(("mfma_c", r), ins.extra["passes"])
            for r in ins.defs: self.h.pop(("valu_w", r), None)
        elif k == "valu":
            for r in ins.defs:
                if r[0] == "s": self._rec(("valu_ws", r))
                else:
                    self._rec(("valu_w", r))
                    self.h.pop(("mfma_w", r), None)
                    if ins.extra.get("trans"): self._rec(("trans_w", r))
                    else: self.h.pop(("trans_w", r), None)
        elif k == "salu":
            for r in ins.defs:
                self._rec(("salu_w", r)); self.h.pop(("valu_ws", r), None)
            if ins.op.startswith(("s_cbranch", "s_branch")):
                lbl = text.split()[1]
                ages = {kk: (self.pos + 1 - v[0], v[1]) for kk, v in self.h.items() if self.pos + 1 - v[0] < 24}
                self.snap.setdefault(lbl, []).append(ages)
        elif k == "vmem":
            for r in ins.extra.get("wide_data", []): self._rec(("st_data", r))
            self.vm.append(tag)
        if k == "ds":
            self.lg.append(tag)
        if ins.op == "s_waitcnt":
            m = re.search(r'vmcnt\((\d+)\)', text)
            if m:
                n = int(m.group(1)); self.vm = self.vm[len(self.vm) - n:] if n < len(self.vm) and n > 0 else ([] if n == 0 else self.vm)
            m = re.search(r'lgkmcnt\((\d+)\)', text)
            if m:
                n = int(m.group(1)); self.lg = self.lg[len(self.lg) - n:] if n < len(self.lg) and n > 0 else ([] if n == 0 else self.lg)
        self.pos += 1
    def _count_after(self, lst, tags):
        idx = -1
        for i, t in enumerate(lst):
            if t in tags: idx = i
        return None if idx < 0 else len(lst) - 1 - idx
    def wait(self, vm=None, lg=None):
        parts = []
        if vm is not None:
            tags = vm if isinstance(vm, (list, set)) else [vm]
            n = self._count_after(self.vm, tags)
            if n is not None: parts.append(f"vmcnt({min(n, 63)})")
        if lg is not None:
            tags = lg if isinstance(lg, (list, set)) else [lg]
            n = self._count_after(self.lg, tags)
            if n is not None: parts.append(f"lgkmcnt({min(n, 15)})")
        if parts:
            self.e("s_waitcnt " + " ".join(parts))
            return True
        return False
    def pending_vm(self, tag): return tag in self.vm
    def pending_lg(self, tag): return tag in self.lg
    def text(self): return "\n".join(self.lines) + "\n"
```

```python
import sys, os
sys.path.insert(0, os.path.dirname(os.path.abspath(__file__)))
from asmlib import Asm

NAME = "interleave_layers__linear_kernel_hedgehog__glu_gated_reglu__prompt"

NONCE = 0
FW = 4096
WQ = 65536
WO = WQ + 16 * 160 * 1024
WGU = WO + 8 * 100 * 1024
WD = WGU + 16 * 240 * 1024
LB0 = WD + 8 * 240 * 1024
XSZ = 64 * 40960
L_XIN = 0
L_XMID = L_XIN + XSZ
L_O = L_XMID + XSZ
L_H = L_O + XSZ
L_PART = L_H + 64 * 98304
L_STIN = L_PART + 16 * 16 * 4096
L_STMID = L_STIN + 64 * 2048
L_FL = L_STMID + 64 * 2048
LSTRIDE = L_FL + 5 * 2048 + 6144
TSOFF = LB0 + 2 * LSTRIDE
WS_SIZE = TSOFF + 256 * 512
FX, F1, F2, F3, F4 = [k * 2048 for k in range(5)]
BIG = 0x40000000

SCR = 131072
LDS_BYTES = 163840

P1POS, P2POS, P3POS, P4POS, ENDPOS = 0, 188, 288, 528, 768

WS, OUT, SA, SB, SX = "s[4:7]", "s[8:11]", "s[12:15]", "s[36:39]", "s[40:43]"
sWAVE, sI, sJ, sC, sTH2, sTH, sKH, sW4K = ["s%d" % k for k in range(44, 52)]
sWQ, sWO, sWG, sWD = ["s%d" % k for k in range(52, 56)]
sXLD, sSTLD, sXST, sSTST, sOST, sOLD, sHST, sHLD, sPST, sPLD, sFI, sFJ = ["s%d" % k for k in range(56, 68)]
LAYER_REGS = [sXLD, sSTLD, sXST, sSTST, sOST, sOLD, sHST, sHLD, sPST, sPLD, sFI, sFJ]
sLAYER, sBUD, sNONCE = "s68", "s69", "s70"
sT0, sT1, sT2, sT3, sT4, sT5 = ["s%d" % k for k in range(71, 77)]
sM = "s[78:79]"; sMlo, sMhi = "s78", "s79"
sJOB, sJJ, sJP, sJF, sXC = "s80", "s81", "s82", "s83", "s84"
sDM = "s85"
sLD = "s86"
sTS = "s[88:89]"

vLANE, vL16, vL16H, vWK, vWKH, vK, vS, vXS2, vSS, vSL, vRM, vRM2 = ["v%d" % k for k in range(0, 12)]
RES = 12
WF = 32
ACC = 64
(vTW, vTA0, vTA1, vTB0, vTB1, vP, vP2, vR, vI, vA0, vA1, vO2, vNON, vFJ4, vFI4, vL4, vRedW, vRedR) = \
    ["v%d" % k for k in range(232, 250)]
vT, vU = "v250", "v251"
ASEL = 252
AF = 216
C2, BP, RS, RR = 224, 226, 228, 230
STR = 184

def v(b, n=1): return f"v{b}" if n == 1 else f"v[{b}:{b+n-1}]"
def a_(b, n=1): return f"a{b}" if n == 1 else f"a[{b}:{b+n-1}]"

LOG2E = 0x3FB8AA3B


class Ring:
    def __init__(self, a):
        self.a = a
        self.reset()
    def reset(self):
        self.issued = []; self.landed = set(); self.consumed = 0; self.read_upto = 0
    def src(self, g):
        p = (16 * g) % ENDPOS
        if p < 160: return sWQ, p * 1024
        if p < P3POS: return sWO, (p - P2POS) * 1024
        if p < P4POS: return sWG, (p - P3POS) * 1024
        return sWD, (p - P4POS) * 1024
    def chunks(self, g):
        need = 16 * (g - 8) + 16
        if self.consumed < need:
            self.barrier()
        assert self.consumed >= need, (g, self.consumed, need)
        assert g not in self.issued
        self.issued.append(g)
        base, off = self.src(g)
        op = f"s_add_u32 {sDM}, {base}, {off}" if off >= 0 else f"s_sub_u32 {sDM}, {base}, {-off}"
        ld = lambda k: (f"buffer_load_dwordx4 {vL16}, {WS}, {sDM} offen offset:{k*1024} sc1 lds", ("g", g))
        return [[(f"s_add_u32 m0, {sW4K}, {(g % 8) * 16384}", None), (op, None), ld(0)], [ld(1)], [ld(2)], [ld(3)]]
    def issue(self, g):
        for ch in self.chunks(g):
            for t, tag in ch: self.a.e(t, tag)
    def note_barrier(self):
        a = self.a
        for g in self.issued:
            if not a.pending_vm(("g", g)) and g not in self.inflight_partial: self.landed.add(g)
        c = self.read_upto
        for t in a.lg:
            if isinstance(t, tuple) and t[0] == "w": c = min(c, t[1])
        if 160 <= c < P2POS: c = P2POS
        self.consumed = max(self.consumed, c)
    inflight_partial = set()
    def barrier(self, g=None):
        if g is not None:
            assert g in self.issued and g not in self.inflight_partial, g
            self.a.wait(vm=("g", g))
        self.a.e("s_barrier")
        self.note_barrier()
    def read(self, pos, dst, pair=False):
        g = pos // 16
        if g not in self.landed:
            self.barrier(g)
        assert g in self.landed
        off = (pos % 128) * 1024
        lo, hi = (vWK, vWKH) if pair else (vL16, vL16H)
        self.a.e(f"ds_read_b128 {v(dst,4)}, {lo if off < 65536 else hi} offset:{off % 65536}", ("w", pos))
        self.read_upto = pos + (2 if pair else 1)


class K:
    def __init__(self, ts=False, mapping="R4", cfg=None):
        self.a = Asm(); self.ring = Ring(self.a); self.ts = ts; self.mapping = mapping
        self.nlab = 0; self.nts = 0; self.tsnames = []
        self.cfg = dict(XL=10, LA=4, AL=5)
        if cfg: self.cfg.update(cfg)
    def e(self, t, tag=None): self.a.e(t, tag)
    def lab(self, p="L"):
        self.nlab += 1
        return f"{p}_{self.nlab}"

    def stamp(self, name):
        if not self.ts: return
        idx = self.nts; self.nts += 1; self.tsnames.append(name)
        assert idx < 32
        l = self.lab("Lts")
        sv_vm = list(self.a.vm); sv_lg = list(self.a.lg)
        self.e(f"s_cmp_lg_u32 {sWAVE}, 0\ns_cbranch_scc1 {l}")
        self.e(f"s_memrealtime s[88:89]\ns_memtime s[92:93]\ns_lshl_b32 s90, {sLAYER}, 8\ns_lshl_b32 s91, s2, 9\ns_add_u32 s90, s90, s91\ns_add_u32 s90, s90, {TSOFF + 8*idx}")
        self.e(f"s_waitcnt lgkmcnt(0)\nv_mov_b32 {vT}, s88\nv_mov_b32 {vU}, s92\ns_mov_b64 exec, 1")
        self.e(f"buffer_store_dwordx2 v[250:251], off, {WS}, s90\ns_mov_b64 exec, -1")
        self.e(l + ":")
        self.a.vm = sv_vm; self.a.lg = sv_lg

    def srd(self, dst, plo, size):
        b = int(dst[2:dst.index(":")])
        self.e(f"s_mov_b32 s{b}, s{plo}\ns_and_b32 s{b+1}, s{plo+1}, 0xffff\ns_mov_b32 s{b+2}, {size}\ns_mov_b32 s{b+3}, 0x20000")

    def make_sel(self, dst, est, tmp):
        self.e(f"v_and_b32 {v(tmp)}, 1, {est}\nv_lshlrev_b32 {v(tmp)}, 4, {v(tmp)}\nv_mov_b32 {v(tmp+1)}, 0x3f80")
        self.e(f"v_lshlrev_b32 {v(tmp)}, {v(tmp)}, {v(tmp+1)}\nv_ashrrev_i32 {v(tmp+1)}, 1, {est}")
        for q in range(4):
            self.e(f"v_cmp_eq_u32 vcc, {q}, {v(tmp+1)}\nv_cndmask_b32 {v(dst+q)}, 0, {v(tmp)}, vcc")

    def pk_sum(self, src, n, tmp):
        h = n // 2
        self.e(f"v_pk_add_f32 {v(tmp,2)}, {v(src,2)}, {v(src+2,2)}")
        self.e(f"v_pk_add_f32 {v(tmp+2,2)}, {v(src+4,2)}, {v(src+6,2)}")
        for q in range(4, h):
            t = tmp + 2 * (q & 1)
            self.e(f"v_pk_add_f32 {v(t,2)}, {v(t,2)}, {v(src+2*q,2)}")
        self.e(f"v_pk_add_f32 {v(tmp,2)}, {v(tmp,2)}, {v(tmp+2,2)}")
        self.e(f"v_add_f32 {v(tmp)}, {v(tmp)}, {v(tmp+1)}")

    def poll(self, addr, soff, mask, after_first=None):
        l, le = self.lab("Lpoll"), self.lab("Lpolle")
        if mask < (1 << 32): self.e(f"s_mov_b64 exec, {hex(mask)}")
        else: self.e(f"s_mov_b32 exec_lo, {hex(mask & 0xffffffff)}\ns_mov_b32 exec_hi, {hex(mask >> 32)}")
        self.e(l + ":")
        self.e(f"buffer_load_dword {vT}, {addr}, {WS}, {soff} offen sc1")
        self.e(f"s_sub_u32 {sBUD}, {sBUD}, 1\ns_cselect_b32 {sBUD}, 0, {sBUD}\ns_cbranch_scc1 {le}")
        self.e(f"s_waitcnt vmcnt(0)\nv_cmp_ne_u32 vcc, {sNONCE}, {vT}\ns_cbranch_vccnz {l}")
        self.e(le + ":")
        self.e("s_waitcnt vmcnt(0)\ns_mov_b64 exec, -1")

    def flag(self, addr, soff):
        self.e(f"s_mov_b64 exec, 1\nbuffer_atomic_swap {vNON}, {addr}, {WS}, {soff} offen sc1\ns_mov_b64 exec, -1")

    def w0(self, fn):
        l = self.lab("Lw0")
        sv = list(self.a.vm)
        self.e(f"s_cmp_lg_u32 {sWAVE}, 0\ns_cbranch_scc1 {l}")
        fn()
        self.e(l + ":")
        self.a.vm = sv

    def sync(self, sreg, foff, own, sttag, pre=(), post=(), send=True):
        r = self.ring
        for g in pre: r.issue(g)
        if send:
            self.a.wait(vm=sttag)
            r.barrier()
        def f():
            self.e(f"s_add_u32 {sT0}, {sreg}, {foff}")
            if send: self.flag(own, sT0)
            self.poll(vL4, sT0, 0xffff)
        if post:
            l, l2 = self.lab("Lsa"), self.lab("Lsb")
            sv = list(self.a.vm)
            self.e(f"s_cmp_eq_u32 {sWAVE}, 0\ns_cbranch_scc0 {l}")
            f()
            self.e(l + ":")
            self.a.vm = sv
            for g in post: r.issue(g)
        else:
            self.w0(f)
        r.barrier()

    def stats(self):
        self.pk_sum(STR, 8, 168)
        self.e(f"v_mov_b32 v169, v168\nv_permlane32_swap_b32 v168, v169")
        self.e(f"v_mul_f32 v168, 0x3acccccd, v168\nv_mul_f32 v169, 0x3acccccd, v169")
        self.e(f"v_fma_f32 v169, -v168, v168, v169\nv_max_f32 v169, 0, v169\nv_add_f32 v169, 0x3727c5ac, v169")
        self.e(f"v_rsq_f32 {v(RS)}, v169")

    def publish_x(self, xoff, stoff, tag):
        P = 128
        for q in range(10):
            self.e(f"v_cvt_pk_bf16_f32 {v(P+q)}, {v(RES+2*q)}, {v(RES+2*q+1)}")
        self.e(f"s_add_u32 {sT0}, {sXST}, {xoff}\ns_add_u32 {sT1}, {sSTST}, {stoff}")
        self.e(f"buffer_store_dwordx4 {v(P,4)}, {vK}, {WS}, {sT0} offen sc1", tag)
        self.e(f"buffer_store_dwordx4 {v(P+4,4)}, {vK}, {WS}, {sT0} offen offset:2048 sc1", tag)
        self.e(f"buffer_store_dwordx2 {v(P+8,2)}, {vXS2}, {WS}, {sT0} offen sc1", tag)
        T = 140
        self.e(f"v_pk_mul_f32 {v(T+4,2)}, {v(RES,2)}, {v(RES,2)}")
        self.e(f"v_pk_mul_f32 {v(T+6,2)}, {v(RES+2,2)}, {v(RES+2,2)}")
        for q in range(2, 10):
            t = T + 4 + 2 * (q & 1)
            self.e(f"v_pk_fma_f32 {v(t,2)}, {v(RES+2*q,2)}, {v(RES+2*q,2)}, {v(t,2)}")
        self.pk_sum(RES, 20, T)
        self.e(f"v_pk_add_f32 {v(T+4,2)}, {v(T+4,2)}, {v(T+6,2)}\nv_add_f32 {v(T+1)}, {v(T+4)}, {v(T+5)}")
        self.e(f"v_permlane32_swap_b32 {v(T)}, {v(T+1)}\nv_add_f32 {v(T)}, {v(T)}, {v(T+1)}\nv_mov_b32 {v(T+1)}, {v(T)}")
        self.e(f"v_permlane16_swap_b32 {v(T)}, {v(T+1)}\nv_add_f32 {v(T)}, {v(T)}, {v(T+1)}")
        self.e(f"buffer_store_dword {v(T)}, {vSS}, {WS}, {sT1} offen sc1", tag)

    def softmax_ops(self, S, order, PK):
        EP, EN, T = 128, 148, 168
        L = []
        L.append(f"v_max3_f32 {v(T)}, {v(S)}, {v(S+1)}, {v(S+2)}")
        L.append(f"v_min3_f32 {v(T+1)}, {v(S)}, {v(S+1)}, {v(S+2)}")
        L.append(f"v_max3_f32 {v(T+2)}, {v(S+3)}, {v(S+4)}, {v(S+5)}")
        L.append(f"v_min3_f32 {v(T+3)}, {v(S+3)}, {v(S+4)}, {v(S+5)}")
        for q in range(7):
            o = 2 * (q & 1)
            L.append(f"v_max3_f32 {v(T+o)}, {v(T+o)}, {v(S+6+2*q)}, {v(S+7+2*q)}")
            L.append(f"v_min3_f32 {v(T+o+1)}, {v(T+o+1)}, {v(S+6+2*q)}, {v(S+7+2*q)}")
        L.append(f"v_max_f32 {v(T)}, {v(T)}, {v(T+2)}")
        L.append(f"v_min_f32 {v(T+1)}, {v(T+1)}, {v(T+3)}")
        L.append(f"v_mul_f32 {v(BP)}, {v(T)}, {v(C2+1)}")
        L.append(f"v_mul_f32 {v(BP+1)}, {v(T+1)}, {v(C2)}")
        for q in range(10):
            L.append(f"v_pk_fma_f32 {v(EP+2*q,2)}, {v(S+2*q,2)}, {v(C2,2)}, {v(BP,2)} op_sel_hi:[1,0,0]")
            L.append(f"v_pk_fma_f32 {v(EN+2*q,2)}, {v(S+2*q,2)}, {v(C2,2)}, {v(BP,2)} op_sel:[0,1,1] op_sel_hi:[1,1,1]")
        for q in range(40):
            L.append(f"v_exp_f32 {v(EP+q)}, {v(EP+q)}")
        for s, E in ((0, EP), (1, EN)):
            t = T + 4 * s
            L.append(f"v_pk_add_f32 {v(t,2)}, {v(E,2)}, {v(E+2,2)}")
            L.append(f"v_pk_add_f32 {v(t+2,2)}, {v(E+4,2)}, {v(E+6,2)}")
        for q in range(4, 10):
            for s, E in ((0, EP), (1, EN)):
                t = T + 4 * s + 2 * (q & 1)
                L.append(f"v_pk_add_f32 {v(t,2)}, {v(t,2)}, {v(E+2*q,2)}")
        for s in (0, 1):
            t = T + 4 * s
            L.append(f"v_pk_add_f32 {v(t,2)}, {v(t,2)}, {v(t+2,2)}")
        for s in (0, 1):
            t = T + 4 * s
            L.append(f"v_add_f32 {v(t)}, {v(t)}, {v(t+1)}")
        L.append(f"v_rcp_f32 {v(RR)}, {v(T)}")
        L.append(f"v_rcp_f32 {v(RR+1)}, {v(T+4)}")
        for q in range(10):
            L.append(f"v_pk_mul_f32 {v(EP+2*q,2)}, {v(EP+2*q,2)}, {v(RR,2)} op_sel_hi:[1,0]")
        for q in range(10):
            L.append(f"v_pk_mul_f32 {v(EN+2*q,2)}, {v(EN+2*q,2)}, {v(RR,2)} op_sel:[0,1] op_sel_hi:[1,1]")
        for s, E in ((0, EP), (1, EN)):
            for q in range(10):
                L.append(f"v_cvt_pk_bf16_f32 {v(PK+order(s,q))}, {v(E+2*q)}, {v(E+2*q+1)}")
        return L

    def gemm32_begin(self, pos0, total, xoff):
        XL, LA = self.cfg["XL"], self.cfg["LA"]
        self.g_pos0, self.g_total, self.g_rd, self.g_xn = pos0, total, 0, 0
        self.e(f"s_add_u32 {sLD}, {sXLD}, {xoff}")
        for s in range(XL): self.xload()
        for n in range(LA): self.g_read()
    def xload(self):
        s = self.g_xn
        if s >= 40: return False
        if s and s % 4 == 0: self.e(f"s_add_u32 {sLD}, {sLD}, 4096")
        self.e(f"buffer_load_dwordx4 {a_(4*s,4)}, {vL16}, {WS}, {sLD} offen offset:{(s%4)*1024} sc1", ("x", s))
        self.g_xn += 1
        return True
    def g_read(self):
        n = self.g_rd
        if n >= self.g_total: return
        self.ring.read(self.g_pos0 + n, WF + 4 * (n % 8))
        self.g_rd += 1
    def gemm32_pass(self, n0, tiles, first, dma=None, fill=None, stoff=None, fill_rate=1, fill_start=3):
        a, r = self.a, self.ring
        dma = dict(dma or {}); fill = list(fill or [])
        pend = []; stn = 0
        nt = len(tiles)
        for s in range(40):
            for ti, acc in enumerate(tiles):
                k = s * nt + ti; n = n0 + k
                self.g_read()
                tagw = ("w", self.g_pos0 + n)
                vmt = ("x", s) if (first and ti == 0) else None
                lgt = None
                if a.pending_lg(tagw):
                    nxt = ("w", self.g_pos0 + n + 1)
                    lgt = nxt if a.pending_lg(nxt) else tagw
                a.wait(vm=vmt, lg=lgt)
                c = "0" if s == 0 else v(acc, 16)
                self.e(f"v_mfma_f32_32x32x16_bf16 {v(acc,16)}, {v(WF+4*(n%8),4)}, {a_(4*s,4)}, {c}")
                if first and ti == 0:
                    if not self.xload() and stoff is not None and stn < 8:
                        if stn == 0: self.e(f"s_add_u32 {sLD}, {sSTLD}, {stoff}")
                        self.e(f"buffer_load_dword {v(STR+stn)}, {vSL}, {WS}, {sLD} offen offset:{stn*256} sc1", "st")
                        stn += 1
                if k in dma:
                    g = dma.pop(k)
                    pend += [(g, ch) for ch in r.chunks(g)]
                    r.inflight_partial = set(x[0] for x in pend)
                if pend and not (first and ti == 0):
                    g, ch = pend.pop(0)
                    for t, tag in ch: self.e(t, tag)
                    r.inflight_partial = set(x[0] for x in pend)
                elif fill and k >= fill_start:
                    for _ in range(fill_rate):
                        if fill:
                            f = fill.pop(0)
                            if isinstance(f, tuple): self.e(*f)
                            else: self.e(f)
        assert not dma and not pend
        assert stoff is None or stn == 8
        for f in fill:
            if isinstance(f, tuple): self.e(*f)
            else: self.e(f)

    def gemm16(self, pos0, R, sbase, dma):
        a, r = self.a, self.ring
        AL = self.cfg["AL"]; LA = 6
        dma = dict(dma); pend = []
        st = dict(ld=0, rd=0)
        def aload():
            q = st["ld"]
            if q >= R: return
            if q == 0: self.e(f"s_mov_b32 {sLD}, {sbase}")
            elif q % 2 == 0: self.e(f"s_add_u32 {sLD}, {sLD}, 4096")
            self.e(f"buffer_load_dwordx4 {a_(8*q,4)}, {vK}, {WS}, {sLD} offen offset:{(q%2)*2048} sc1", ("x", q))
            self.e(f"buffer_load_dwordx4 {a_(8*q+4,4)}, {vS}, {WS}, {sLD} offen offset:{(q%2)*2048} sc1", ("x", q))
            st["ld"] += 1
        def wread():
            n = st["rd"]
            if n >= 5 * R: return
            r.read(pos0 + 2 * n, WF + 4 * (n % 8), pair=True)
            st["rd"] += 1
        for q in range(min(AL, R)): aload()
        for n in range(LA): wread()
        for q in range(R):
            for t in range(5):
                n = 5 * q + t
                tagw = ("w", pos0 + 2 * n)
                lgt = None
                if a.pending_lg(tagw):
                    nxt = ("w", pos0 + 2 * n + 2)
                    lgt = nxt if a.pending_lg(nxt) else tagw
                a.wait(vm=("x", q) if t == 0 else None, lg=lgt)
                for lam in (0, 1):
                    acc = ACC + 20 * lam + 4 * t
                    c = "0" if q == 0 else v(acc, 4)
                    self.e(f"v_mfma_f32_16x16x32_bf16 {v(acc,4)}, {v(WF+4*(n%8),4)}, {a_(8*q+4*lam,4)}, {c}")
                    if lam == 0: wread()
                if t == 0: aload()
                if n in dma:
                    g = dma.pop(n)
                    pend += [(g, ch) for ch in r.chunks(g)]
                    r.inflight_partial = set(x[0] for x in pend)
                if pend and t != 0:
                    g, ch = pend.pop(0)
                    for tx, tag in ch: self.e(tx, tag)
                    r.inflight_partial = set(x[0] for x in pend)
        assert not dma and not pend
        for t in range(5):
            self.e(f"ds_write_b128 {vRedW}, {v(ACC+20+4*t,4)} offset:{t*1024}", "red")
        for q in range(10):
            self.e(f"v_pk_add_f32 {v(RES+2*q,2)}, {v(RES+2*q,2)}, {v(ACC+2*q,2)}")
        a.wait(lg="red")
        r.barrier()
        for t in range(5):
            self.e(f"ds_read_b128 {v(ACC+40+4*t,4)}, {vRedR} offset:{t*1024}", ("rr", t))
        for t in range(5):
            a.wait(lg=("rr", t))
            for h in (0, 1):
                q = 2 * t + h
                self.e(f"v_pk_add_f32 {v(RES+2*q,2)}, {v(RES+2*q,2)}, {v(ACC+40+2*q,2)}")

    def prologue(self):
        e = self.e
        e("s_cmp_ge_u32 s2, 256\ns_cbranch_scc1 L_exit")
        if self.ts: e("s_memrealtime s[94:95]")
        e("s_load_dwordx16 s[16:31], s[0:1], 0\ns_load_dwordx2 s[32:33], s[0:1], 64\ns_load_dwordx2 s[34:35], s[0:1], 80")
        e(f"v_lshrrev_b32 v1, 6, v0\nv_and_b32 {vLANE}, 63, v0\nv_readfirstlane_b32 {sWAVE}, v1")
        e(f"s_and_b32 {sXC}, s2, 7\ns_lshr_b32 {sJOB}, s2, 3")
        if self.mapping == "R4":
            e(f"s_lshr_b32 {sT0}, {sXC}, 1\ns_lshl_b32 {sT0}, {sT0}, 2\ns_and_b32 {sT1}, {sJOB}, 3\ns_add_u32 {sI}, {sT0}, {sT1}")
            e(f"s_and_b32 {sT0}, {sXC}, 1\ns_lshl_b32 {sT0}, {sT0}, 3\ns_lshr_b32 {sT1}, {sJOB}, 2\ns_add_u32 {sJ}, {sT0}, {sT1}")
        elif self.mapping == "R8":
            e(f"s_lshl_b32 {sT0}, {sXC}, 1\ns_and_b32 {sT1}, {sJOB}, 1\ns_add_u32 {sI}, {sT0}, {sT1}\ns_lshr_b32 {sJ}, {sJOB}, 1")
        elif self.mapping == "R2":
            e(f"s_lshr_b32 {sT0}, {sXC}, 2\ns_lshl_b32 {sT0}, {sT0}, 3\ns_and_b32 {sT1}, {sJOB}, 7\ns_add_u32 {sI}, {sT0}, {sT1}")
            e(f"s_and_b32 {sT0}, {sXC}, 3\ns_lshl_b32 {sT0}, {sT0}, 2\ns_lshr_b32 {sT1}, {sJOB}, 3\ns_add_u32 {sJ}, {sT0}, {sT1}")
        if self.mapping == "R2":
            e(f"s_lshr_b32 {sC}, {sJ}, 1\ns_and_b32 {sTH2}, {sJ}, 1")
        else:
            e(f"s_lshr_b32 {sT0}, {sJ}, 3\ns_lshl_b32 {sT0}, {sT0}, 2\ns_and_b32 {sT1}, {sJ}, 3\ns_add_u32 {sC}, {sT0}, {sT1}")
            e(f"s_lshr_b32 {sTH2}, {sJ}, 2\ns_and_b32 {sTH2}, {sTH2}, 1")
        e(f"s_and_b32 {sTH}, {sWAVE}, 1\ns_lshr_b32 {sKH}, {sWAVE}, 1\ns_lshl_b32 {sW4K}, {sWAVE}, 12")
        e(f"s_mov_b32 {sLAYER}, 0\ns_mov_b32 {sBUD}, 0x20000")
        e(f"v_lshlrev_b32 {vL16}, 4, {vLANE}\nv_and_b32 v56, 15, {vLANE}\nv_lshrrev_b32 v57, 4, {vLANE}")
        e(f"v_and_b32 v58, 31, {vLANE}\nv_lshrrev_b32 v59, 5, {vLANE}")
        e(f"s_lshl_b32 {sT0}, {sI}, 2\ns_lshl_b32 {sT1}, {sTH2}, 1\ns_add_u32 {sT0}, {sT0}, {sT1}\ns_add_u32 {sT5}, {sT0}, {sTH}")
        e(f"s_lshl_b32 {sT0}, {sT5}, 5\ns_lshl_b32 {sT1}, {sKH}, 4\ns_add_u32 {sT0}, {sT0}, {sT1}")
        e(f"s_mul_i32 {sT0}, {sT0}, 1280\ns_mul_i32 {sT1}, {sC}, 160\ns_add_u32 {sT0}, {sT0}, {sT1}")
        e(f"v_mul_u32_u24 v60, 1280, v56\nv_add_u32 v60, {sT0}, v60")
        e(f"v_lshl_add_u32 {vRM}, v57, 4, v60\nv_lshl_add_u32 {vRM2}, v57, 3, v60\nv_add_u32 {vRM2}, 128, {vRM2}")
        e("s_waitcnt lgkmcnt(0)")
        self.srd(WS, 34, WS_SIZE)
        self.srd(SX, 16, 2048 * 1280)
        e(f"v_mov_b32 {vT}, 0")
        e(f"buffer_load_dwordx4 v[224:227], {vRM}, {SX}, 0 offen")
        e(f"buffer_load_dwordx4 v[228:231], {vRM}, {SX}, 0 offen offset:64")
        e(f"buffer_load_dwordx2 v[62:63], {vRM2}, {SX}, 0 offen")
        e(f"buffer_load_dword {vNON}, {vT}, {WS}, 0 offen sc1")
        self.srd(OUT, 32, 2048 * 1280)
        e("v_lshrrev_b32 v60, 4, v58\nv_lshlrev_b32 v60, 4, v60\nv_bfe_u32 v61, v58, 2, 1\nv_lshl_add_u32 v60, v61, 3, v60")
        e("v_bfe_u32 v61, v58, 3, 1\nv_lshl_add_u32 v60, v61, 2, v60\nv_and_b32 v61, 3, v58\nv_add_u32 v60, v60, v61")
        e(f"s_mov_b32 {sJF}, {FW + 24*128}")
        e(f"s_cmp_lt_u32 {sJOB}, 6\ns_cbranch_scc1 L_q1\ns_cmp_lt_u32 {sJOB}, 18\ns_cbranch_scc1 L_g1\ns_cmp_lt_u32 {sJOB}, 27\ns_cbranch_scc1 L_c1")
        e("s_branch L_j1")
        e("L_q1:")
        e(f"s_cmp_ge_u32 {sJOB}, 3\ns_cselect_b32 {sT0}, 1, 0\ns_lshl_b32 {sJJ}, {sXC}, 1\ns_add_u32 {sJJ}, {sJJ}, {sT0}")
        e(f"s_mul_i32 {sT0}, {sT0}, 3\ns_sub_u32 {sJP}, {sJOB}, {sT0}")
        e(f"s_add_u32 {sT0}, {sJP}, 1\ns_cmp_eq_u32 {sT0}, 3\ns_cselect_b32 {sT0}, 0, {sT0}")
        e(f"s_mul_i32 {sT0}, {sT0}, 1280\ns_mul_i32 {sT1}, {sJJ}, 80\ns_add_u32 {sT0}, {sT0}, {sT1}")
        e(f"s_mul_i32 {sT1}, {sWAVE}, {160*3840}\ns_add_u32 {sT0}, {sT0}, {sT1}")
        self.srd(SA, 18, 640 * 3840)
        self.srd(SB, 20, 25600)
        e("v_mul_u32_u24 v61, 3840, v60\nv_lshl_add_u32 v61, v59, 4, v61")
        for T in range(5):
            for kp in range(3):
                e(f"buffer_load_dwordx4 {a_(4*(3*T+kp),4)}, v61, {SA}, {sT0} offen offset:{32*kp}")
            if T < 4: e(f"s_add_u32 {sT0}, {sT0}, {32*3840}")
        e(f"s_lshl_b32 {sT1}, {sWAVE}, 11\ns_add_u32 m0, {sT1}, {SCR}\ns_mul_i32 {sT1}, {sJJ}, 1600")
        e(f"buffer_load_dwordx4 {vL16}, {SB}, {sT1} offen lds")
        e(f"buffer_load_dwordx4 {vL16}, {SB}, {sT1} offen offset:1024 lds")
        e(f"s_lshl_b32 {sJF}, {sJJ}, 7\ns_lshl_b32 {sT0}, {sJP}, 2\ns_add_u32 {sJF}, {sJF}, {sT0}\ns_add_u32 {sJF}, {sJF}, {FW}")
        e("s_branch L_j1")
        e("L_g1:")
        e(f"s_sub_u32 {sJP}, {sJOB}, 6\ns_cmp_ge_u32 {sJP}, 6\ns_cselect_b32 {sT0}, 1, 0\ns_lshl_b32 {sJJ}, {sXC}, 1\ns_add_u32 {sJJ}, {sJJ}, {sT0}")
        e(f"s_mul_i32 {sT0}, {sT0}, 6\ns_sub_u32 {sJP}, {sJP}, {sT0}")
        e(f"s_mul_i32 {sT0}, {sJJ}, 192\ns_lshl_b32 {sT1}, {sJP}, 5\ns_add_u32 {sT0}, {sT0}, {sT1}")
        e(f"s_mul_i32 {sT1}, {sWAVE}, {160*3072}\ns_add_u32 {sT0}, {sT0}, {sT1}")
        self.srd(SA, 26, 640 * 3072)
        self.srd(SB, 28, 640 * 3072)
        e("v_mul_u32_u24 v61, 3072, v60\nv_lshl_add_u32 v61, v59, 4, v61")
        for T in range(5):
            e(f"buffer_load_dwordx4 {a_(8*T,4)}, v61, {SA}, {sT0} offen")
            e(f"buffer_load_dwordx4 {a_(8*T+4,4)}, v61, {SB}, {sT0} offen")
            if T < 4: e(f"s_add_u32 {sT0}, {sT0}, {32*3072}")
        e(f"s_lshl_b32 {sJF}, {sJJ}, 7\ns_lshl_b32 {sT0}, {sJP}, 2\ns_add_u32 {sJF}, {sJF}, {sT0}\ns_add_u32 {sJF}, {sJF}, {FW + 12}")
        e("s_branch L_j1")
        e("L_c1:")
        e(f"s_sub_u32 {sJP}, {sJOB}, 18")
        e(f"s_lshl_b32 {sJF}, {sXC}, 7\ns_lshl_b32 {sT0}, {sJP}, 2\ns_add_u32 {sJF}, {sJF}, {sT0}\ns_add_u32 {sJF}, {sJF}, {FW + 16*128}")
        e(f"s_mul_i32 {sT4}, {sXC}, 160\ns_lshl_b32 {sT1}, {sWAVE}, 1")
        e("v_lshrrev_b32 v48, 2, v56\nv_and_b32 v49, 3, v56")
        e(f"s_cmp_ge_u32 {sJP}, 3\ns_cbranch_scc1 L_c1d")
        e(f"s_lshl_b32 {sJJ}, {sJP}, 3\ns_add_u32 {sJJ}, {sJJ}, {sT1}")
        e(f"s_cmp_ge_u32 {sJJ}, 20\ns_cbranch_scc1 L_j1")
        self.srd(SA, 22, 640 * 1280)
        for n in range(2):
            e(f"s_add_u32 {sT0}, {sJJ}, {n}\ns_lshl_b32 {sT0}, {sT0}, 2\nv_add_u32 v50, {sT0}, v48")
            e("v_mul_u32_u24 v51, 205, v50\nv_lshrrev_b32 v51, 10, v51\nv_mul_u32_u24 v52, 5, v51\nv_sub_u32 v52, v50, v52")
            e("v_and_b32 v53, 1, v52\nv_mul_u32_u24 v53, 20, v53\nv_lshrrev_b32 v54, 1, v52\nv_lshl_add_u32 v53, v54, 3, v53")
            e("v_mul_u32_u24 v51, 40, v51\nv_add_u32 v51, v51, v49\nv_cmp_gt_u32 vcc, 4, v52")
            for a2 in range(2):
                e(f"v_add_u32 v54, {4*a2}, v53\nv_cndmask_b32 v54, {16+20*a2}, v54, vcc\nv_add_u32 v54, v54, v51")
                e(f"v_mul_u32_u24 v54, 1280, v54\nv_lshl_add_u32 {v(44+2*n+a2)}, v57, 4, v54")
        e("s_branch L_c1l")
        e("L_c1d:")
        e(f"s_sub_u32 {sJJ}, {sJP}, 3\ns_lshl_b32 {sJJ}, {sJJ}, 3\ns_add_u32 {sJJ}, {sJJ}, {sT1}")
        self.srd(SA, 30, 1536 * 1280)
        e(f"s_lshl_b32 {sT0}, {sJJ}, 5\nv_lshl_add_u32 v50, v48, 3, v49\nv_add_u32 v50, {sT0}, v50")
        e("v_mul_u32_u24 v50, 1280, v50\nv_lshl_add_u32 v44, v57, 4, v50")
        e(f"v_add_u32 v45, {4*1280}, v44\nv_add_u32 v46, {32*1280}, v44\nv_add_u32 v47, {36*1280}, v44")
        e("L_c1l:")
        for n in range(2):
            for a2 in range(2):
                for grp in range(3):
                    e(f"buffer_load_dwordx4 {a_(4*(6*n+3*a2+grp),4)}, {v(44+2*n+a2)}, {SA}, {sT4} offen offset:{64*grp}")
        e("L_j1:")
        e(f"s_mul_i32 {sT0}, {sJ}, {160*1024}\ns_add_u32 {sT0}, {sT0}, {sW4K}\ns_add_u32 {sWQ}, {sT0}, {WQ}")
        e(f"s_mul_i32 {sT0}, {sC}, {100*1024}\ns_add_u32 {sT0}, {sT0}, {sW4K}\ns_add_u32 {sWO}, {sT0}, {WO}")
        e(f"s_mul_i32 {sT0}, {sJ}, {240*1024}\ns_add_u32 {sT0}, {sT0}, {sW4K}\ns_add_u32 {sWG}, {sT0}, {WGU}")
        e(f"s_mul_i32 {sT0}, {sC}, {240*1024}\ns_add_u32 {sT0}, {sT0}, {sW4K}\ns_add_u32 {sWD}, {sT0}, {WD}")
        e(f"s_lshl_b32 {sT4}, {sI}, 2\ns_add_u32 {sT4}, {sT4}, {sWAVE}")
        e(f"s_mul_i32 {sT0}, {sT4}, 40960\ns_add_u32 {sXLD}, {sT0}, {LB0}")
        e(f"s_mul_i32 {sT1}, {sJ}, 2560\ns_add_u32 {sOST}, {sT0}, {sT1}\ns_add_u32 {sOST}, {sOST}, {LB0 + L_O}")
        e(f"s_lshl_b32 {sT0}, {sT4}, 11\ns_add_u32 {sSTLD}, {sT0}, {LB0}")
        e(f"s_mul_i32 {sT0}, {sT4}, 98304\ns_mul_i32 {sT1}, {sJ}, 6144\ns_add_u32 {sT0}, {sT0}, {sT1}\ns_add_u32 {sHST}, {sT0}, {LB0 + L_H}")
        e(f"s_mul_i32 {sT0}, {sT5}, 40960\ns_mul_i32 {sT1}, {sC}, 5120\ns_add_u32 {sXST}, {sT0}, {sT1}\ns_add_u32 {sXST}, {sXST}, {LB0}")
        e(f"s_mul_i32 {sT1}, {sKH}, 20480\ns_add_u32 {sOLD}, {sT0}, {sT1}\ns_add_u32 {sOLD}, {sOLD}, {LB0 + L_O}")
        e(f"s_lshl_b32 {sT0}, {sT5}, 11\ns_lshl_b32 {sT1}, {sC}, 8\ns_add_u32 {sSTST}, {sT0}, {sT1}\ns_add_u32 {sSTST}, {sSTST}, {LB0}")
        e(f"s_mul_i32 {sT0}, {sT5}, 98304\ns_mul_i32 {sT1}, {sKH}, 49152\ns_add_u32 {sT0}, {sT0}, {sT1}\ns_add_u32 {sHLD}, {sT0}, {LB0 + L_H}")
        e(f"s_lshl_b32 {sT0}, {sJ}, 16\ns_lshl_b32 {sT1}, {sWAVE}, 10\ns_add_u32 {sPLD}, {sT0}, {sT1}\ns_add_u32 {sPLD}, {sPLD}, {LB0 + L_PART}")
        e(f"s_lshl_b32 {sT1}, {sI}, 12\ns_add_u32 {sT0}, {sT0}, {sT1}\ns_mul_i32 {sT1}, {sKH}, 1920\ns_add_u32 {sT0}, {sT0}, {sT1}")
        e(f"s_add_u32 {sPST}, {sT0}, {LB0 + L_PART}")
        e(f"s_lshl_b32 {sT0}, {sI}, 7\ns_add_u32 {sFI}, {sT0}, {LB0 + L_FL}\ns_lshl_b32 {sT0}, {sJ}, 7\ns_add_u32 {sFJ}, {sT0}, {LB0 + L_FL}")
        e(f"v_add_u32 {vL16H}, 0x10000, {vL16}\ns_lshl_b32 {sT0}, {sKH}, 10\nv_add_u32 {vWK}, {sT0}, {vL16}\nv_add_u32 {vWKH}, 0x10000, {vWK}")
        e("v_lshlrev_b32 v61, 4, v56\nv_lshl_add_u32 v55, v57, 9, v61")
        e(f"s_lshl_b32 {sT0}, {sKH}, 8\nv_add_u32 {vK}, {sT0}, v55\ns_xor_b32 {sT1}, {sT0}, 256\nv_add_u32 {vS}, {sT1}, v55")
        e(f"v_lshrrev_b32 v54, 1, v57\nv_and_b32 v53, 1, v57\nv_lshl_add_u32 v52, v54, 9, v61\nv_lshl_add_u32 v52, v53, 3, v52")
        e(f"s_add_u32 {sT0}, {sT0}, 4096\nv_add_u32 {vXS2}, {sT0}, v52")
        e(f"v_lshlrev_b32 v52, 2, v56\nv_lshl_add_u32 v52, v54, 6, v52\ns_lshl_b32 {sT0}, {sKH}, 7\nv_add_u32 {vSS}, {sT0}, v52")
        e(f"v_lshlrev_b32 v52, 2, v56\nv_lshl_add_u32 v52, v59, 6, v52\nv_lshl_add_u32 {vSL}, v53, 7, v52")
        e(f"s_lshl_b32 {sT0}, {sWAVE}, 12\ns_add_u32 {sT0}, {sT0}, {SCR}\nv_lshlrev_b32 v52, 7, v58\nv_lshl_add_u32 v52, v59, 14, v52")
        e(f"v_and_b32 v51, 7, v58\nv_lshl_add_u32 v52, v51, 4, v52\nv_add_u32 {vTW}, {sT0}, v52")
        e("v_lshrrev_b32 v51, 2, v56\nv_and_b32 v50, 3, v56\nv_lshl_add_u32 v50, v53, 2, v50")
        e(f"s_lshl_b32 {sT0}, {sKH}, 14\ns_add_u32 {sT0}, {sT0}, {SCR}\ns_mul_i32 {sT1}, {sTH}, 5")
        e(f"v_lshl_add_u32 v49, v59, 3, v51\nv_lshlrev_b32 v49, 7, v49\nv_add_u32 v49, {sT0}, v49")
        e(f"v_add_u32 v48, {sT1}, v50\nv_min_u32 v50, 5, v50\nv_add_u32 v50, 10, v50")
        for (src, d0, d1) in (("v48", vTA0, vTA1), ("v50", vTB0, vTB1)):
            e(f"v_lshrrev_b32 v47, 1, {src}\nv_xor_b32 v47, v47, v51\nv_and_b32 v46, 1, {src}\nv_lshlrev_b32 v46, 3, v46")
            e(f"v_lshl_add_u32 v46, v47, 4, v46\nv_add_u32 {d0}, v49, v46\nv_xor_b32 v46, 64, v46\nv_add_u32 v46, 512, v46\nv_add_u32 {d1}, v49, v46")
        e(f"v_mov_b32 v46, {BIG}\nv_lshlrev_b32 v47, 4, v58\nv_cmp_gt_u32 vcc, 24, v58\nv_cndmask_b32 v47, v46, v47, vcc")
        e(f"v_lshl_add_u32 {vP}, v59, 3, v47\nv_cmp_gt_u32 vcc, 24, {vLANE}\nv_cndmask_b32 {vP2}, v46, v47, vcc")
        e(f"s_mul_i32 {sT0}, {sTH}, 768\nv_add_u32 {vP}, {sT0}, {vP}\ns_lshl_b32 {sT0}, {sTH}, 3\ns_add_u32 {sT0}, {sT0}, 1536\nv_add_u32 {vP2}, {sT0}, {vP2}")
        e(f"v_lshl_add_u32 {vR}, v57, 12, v61")
        e(f"s_lshl_b32 {sT0}, {sWAVE}, 10\ns_add_u32 {sT0}, {sT0}, {SCR}\nv_lshl_add_u32 v47, v57, 3, v61\nv_add_u32 {vI}, {sT0}, v47")
        e(f"v_lshrrev_b32 v47, 3, v58\nv_and_b32 v46, 3, v58\nv_lshl_add_u32 v47, v47, 2, v46\nv_mul_u32_u24 v46, 120, v59")
        e(f"v_add_u32 v45, v46, v47\nv_lshlrev_b32 v45, 4, v45\nv_add_u32 {vA0}, {SCR}, v45")
        e(f"v_add_u32 v47, 16, v47\nv_min_u32 v47, 23, v47\nv_add_u32 v45, v46, v47\nv_lshlrev_b32 v45, 4, v45\nv_add_u32 {vA1}, {SCR}, v45")
        e(f"v_lshlrev_b32 v47, 4, v58\nv_lshl_add_u32 {vO2}, v59, 3, v47")
        e(f"s_lshl_b32 {sT0}, {sJ}, 2\nv_mov_b32 {vFJ4}, {sT0}\ns_lshl_b32 {sT0}, {sI}, 2\nv_mov_b32 {vFI4}, {sT0}\nv_lshlrev_b32 {vL4}, 2, {vLANE}")
        e(f"s_mul_i32 {sT0}, {sWAVE}, 5120\ns_add_u32 {sT0}, {sT0}, {SCR}\nv_add_u32 {vRedW}, {sT0}, {vL16}")
        e(f"s_xor_b32 {sT0}, {sWAVE}, 2\ns_mul_i32 {sT0}, {sT0}, 5120\ns_add_u32 {sT0}, {sT0}, {SCR}\nv_add_u32 {vRedR}, {sT0}, {vL16}")
        self.make_sel(ASEL, "v56", 46)
        for q in range(40): e(f"v_accvgpr_write_b32 {a_(AF+q)}, 0")
        e(f"s_add_u32 {sT0}, {sFI}, {FX}\nv_add_u32 v43, {sT0}, {vL4}")
        e(f"s_lshl_b32 {sT0}, {sJ}, 7\ns_add_u32 {sT0}, {sT0}, {FW - 64}\nv_add_u32 v46, {sT0}, {vL4}\nv_cmp_lt_u32 vcc, 15, {vLANE}\nv_cndmask_b32 v43, v43, v46, vcc")
        e(f"s_lshl_b32 {sT0}, {sC}, 7\ns_add_u32 {sT0}, {sT0}, {FW + 16*128 - 100}\nv_add_u32 v46, {sT0}, {vL4}\nv_cmp_lt_u32 vcc, 24, {vLANE}\nv_cndmask_b32 v43, v43, v46, vcc")
        e("s_waitcnt vmcnt(0)")
        self.stamp("p0 loaded")
        e(f"v_readfirstlane_b32 {sNONCE}, {vNON}")
        for q in range(10):
            src = 224 + q if q < 8 else 62 + (q - 8)
            e(f"v_lshlrev_b32 {v(RES+2*q)}, 16, {v(src)}\nv_and_b32 {v(RES+2*q+1)}, 0xffff0000, {v(src)}")
        e(f"s_mul_i32 {sNONCE}, {sNONCE}, 0x9E3779B1\ns_add_u32 {sNONCE}, {sNONCE}, 0x7F4A7C15\nv_mov_b32 {vNON}, {sNONCE}")
        self.publish_x(L_XIN, L_STIN, "p0")
        e(f"s_cmp_lt_u32 {sJOB}, 6\ns_cbranch_scc1 L_q2\ns_cmp_lt_u32 {sJOB}, 18\ns_cbranch_scc1 L_g2\ns_cmp_lt_u32 {sJOB}, 27\ns_cbranch_scc1 L_c2")
        e("s_branch L_j2")
        e("L_q2:")
        e("v_lshrrev_b32 v52, 3, v58\nv_bfe_u32 v53, v58, 2, 1\nv_and_b32 v54, 3, v58")
        e(f"s_cmp_eq_u32 {sJP}, 1\ns_cbranch_scc1 L_q2v")
        e("v_lshrrev_b32 v51, 2, v56\nv_lshl_add_u32 v51, v59, 3, v51\nv_mul_u32_u24 v51, 40, v51")
        e(f"s_lshl_b32 {sT0}, {sWAVE}, 11\ns_add_u32 {sT0}, {sT0}, {SCR}\nv_add_u32 v51, {sT0}, v51")
        e("v_bfe_u32 v50, v56, 1, 1\nv_and_b32 v49, 1, v57\nv_lshl_add_u32 v50, v49, 1, v50\nv_lshl_add_u32 v50, v50, 3, v51\nv_add_u32 v51, 32, v51")
        PFQ = 160 + 64
        for nu in range(2):
            for kp in range(3):
                for u in range(2):
                    e(f"ds_read_b64_tr_b16 {a_(64 + 4*(3*nu+kp) + 2*u, 2)}, {'v50' if nu == 0 else 'v51'} offset:{(16*kp+4*u)*40}")
        e("s_waitcnt lgkmcnt(0)")
        for kp in range(3):
            for u in range(2):
                m = []
                for g in range(2):
                    hd = (16 * kp + 8 * g + 4 * u) // 20
                    m.append({0: 0x0F0F0F0F, 1: 0xF0F0F0F0, 2: 0}[hd])
                e(f"s_mov_b32 {sMlo}, {hex(m[0])}\ns_mov_b32 {sMhi}, {hex(m[1])}")
                for nu in range(2):
                    for h in range(2):
                        idx = 4 * (3 * nu + kp) + 2 * u + h
                        tmp = 46 + (2 * nu + h)
                        e(f"v_accvgpr_read_b32 {v(tmp)}, {a_(64+idx)}")
                for nu in range(2):
                    for h in range(2):
                        idx = 4 * (3 * nu + kp) + 2 * u + h
                        tmp = 46 + (2 * nu + h)
                        e(f"v_cndmask_b32 {v(tmp)}, 0, {v(tmp)}, {sM}\nv_accvgpr_write_b32 {a_(96+idx)}, {v(tmp)}")
        e("s_branch L_q2m")
        e("L_q2v:")
        e("v_mul_u32_u24 v51, 20, v53\nv_lshl_add_u32 v51, v52, 2, v51\nv_add_u32 v51, v51, v54\nv_lshlrev_b32 v50, 3, v59\nv_sub_u32 v51, v51, v50")
        for nu in range(2):
            for kp in range(3):
                e(f"v_add_u32 v50, {16*nu - 16*kp}, v51")
                self.make_sel(32, "v50", 46)
                for q in range(4): e(f"v_accvgpr_write_b32 {a_(96 + 4*(3*nu+kp) + q)}, {v(32+q)}")
        e("L_q2m:")
        for T in range(5):
            for nu in range(2):
                D = 64 + 32 * T + 16 * nu
                for kp in range(3):
                    e(f"v_mfma_f32_32x32x16_bf16 {v(D,16)}, {a_(4*(3*T+kp),4)}, {a_(96+4*(3*nu+kp),4)}, {'0' if kp == 0 else v(D,16)}")
        for nu in range(2):
            e(f"s_mul_i32 {sT0}, {sJP}, 5\ns_add_u32 {sT0}, {sT0}, {4*nu}\nv_add_u32 v46, {sT0}, v52\nv_lshrrev_b32 v47, 2, v46\nv_and_b32 v46, 3, v46")
            e(f"v_lshlrev_b32 v46, 3, v46\nv_lshl_add_u32 v46, v53, 2, v46\nv_add_u32 v46, v46, v54\nv_lshl_add_u32 v46, v59, 5, v46\nv_lshlrev_b32 v46, 4, v46")
            e(f"v_mov_b32 v45, 120\nv_cmp_gt_u32 vcc, 3, v47\nv_cndmask_b32 v47, v45, v47, vcc\nv_lshl_add_u32 {v(48+nu)}, v47, 10, v46")
            e(f"v_mov_b32 v46, 3072\nv_mov_b32 v45, 1024\nv_cndmask_b32 {v(50+nu)}, v45, v46, vcc")
            e(f"s_mul_i32 {sT0}, {sWAVE}, 10\nv_mul_u32_u24 v46, {sT0}, {v(50+nu)}\nv_add_u32 {v(48+nu)}, {v(48+nu)}, v46")
        e(f"v_mov_b32 v46, {BIG}\nv_cmp_gt_u32 vcc, 8, v58\nv_cndmask_b32 v49, v46, v49, vcc")
        for nu in range(2):
            t = 32 + 4 * nu
            for T in range(5):
                D = 64 + 32 * T + 16 * nu
                for q in range(8):
                    tt = t + 2 * (q & 1)
                    if T == 0 and q < 2: e(f"v_pk_add_f32 {v(tt,2)}, {v(D+2*q,2)}, 0")
                    else: e(f"v_pk_add_f32 {v(tt,2)}, {v(tt,2)}, {v(D+2*q,2)}")
            e(f"v_pk_add_f32 {v(t,2)}, {v(t,2)}, {v(t+2,2)}\nv_add_f32 {v(t)}, {v(t)}, {v(t+1)}")
        e("v_permlane32_swap_b32 v32, v36\nv_add_f32 v32, v32, v36")
        self.colmean_xwave(32)
        e("v_mov_b32 v34, v32\nv_permlane32_swap_b32 v32, v34")
        e(f"s_mul_i32 {sT0}, {sJJ}, {160*1024}\ns_add_u32 {sT0}, {sT0}, {WQ}")
        for T in range(5):
            for u in range(2):
                for nu in range(2):
                    D = 64 + 32 * T + 16 * nu + 8 * u
                    for q in range(4):
                        e(f"v_pk_add_f32 {v(D+2*q,2)}, {v(D+2*q,2)}, {v(32+2*nu,2)} op_sel_hi:[1,0]")
                    for q in range(4):
                        e(f"v_cvt_pk_bf16_f32 {v(D+q)}, {v(D+2*q)}, {v(D+2*q+1)}")
                    e(f"buffer_store_dwordx4 {v(D,4)}, {v(48+nu)}, {WS}, {sT0} offen sc1")
                    e(f"v_add_u32 {v(48+nu)}, {v(48+nu)}, {v(50+nu)}")
        e("s_branch L_j2")
        e("L_g2:")
        e("v_lshrrev_b32 v52, 3, v58\nv_bfe_u32 v53, v58, 2, 1\nv_and_b32 v54, 3, v58\nv_and_b32 v51, 1, v52\nv_lshl_add_u32 v51, v51, 2, v54")
        e("v_cmp_eq_u32 vcc, v53, v59\nv_cndmask_b32 v51, -2, v51, vcc\nv_cmp_gt_u32 vcc, 2, v52\nv_cndmask_b32 v50, -2, v51, vcc\nv_mov_b32 v49, -2\nv_cndmask_b32 v51, v51, v49, vcc")
        self.make_sel(32, "v50", 46)
        self.make_sel(36, "v51", 46)
        for T in range(5):
            D = 64 + 16 * T
            e(f"v_mfma_f32_32x32x16_bf16 {v(D,16)}, {a_(8*T,4)}, v[32:35], 0")
            e(f"v_mfma_f32_32x32x16_bf16 {v(D,16)}, {a_(8*T+4,4)}, v[36:39], {v(D,16)}")
        e(f"s_cmp_lt_u32 {sJP}, 5\ns_cselect_b32 {sT1}, 2, 1\ns_mov_b32 {sT2}, 195\ns_cselect_b32 {sT2}, 117, {sT2}")
        e(f"s_cmp_lt_u32 {sJP}, 3\ns_cselect_b32 {sT1}, 3, {sT1}\ns_cselect_b32 {sT2}, 0, {sT2}\ns_add_u32 {sT2}, {sT2}, {sJP}")
        e(f"s_mul_i32 {sT0}, {sWAVE}, 10\ns_mul_i32 {sT0}, {sT0}, {sT1}\ns_add_u32 {sT2}, {sT2}, {sT0}\ns_lshl_b32 {sT2}, {sT2}, 10\ns_lshl_b32 {sT1}, {sT1}, 10")
        e(f"s_mul_i32 {sT0}, {sJJ}, {240*1024}\ns_add_u32 {sT0}, {sT0}, {sT2}\ns_add_u32 {sT0}, {sT0}, {WGU}")
        self.pk_sum(64, 80, 32)
        e("v_mov_b32 v33, v32\nv_permlane32_swap_b32 v32, v33\nv_add_f32 v32, v32, v33")
        self.colmean_xwave(32)
        for T in range(5):
            for u in range(2):
                D = 64 + 16 * T + 8 * u
                for q in range(4):
                    e(f"v_pk_add_f32 {v(D+2*q,2)}, {v(D+2*q,2)}, v[32:33] op_sel_hi:[1,0]")
                for q in range(4):
                    e(f"v_cvt_pk_bf16_f32 {v(D+q)}, {v(D+2*q)}, {v(D+2*q+1)}")
                e(f"buffer_store_dwordx4 {v(D,4)}, {vL16}, {WS}, {sT0} offen sc1")
                e(f"s_add_u32 {sT0}, {sT0}, {sT1}")
        e("s_branch L_j2")
        e("L_c2:")
        e(f"s_cmp_ge_u32 {sJP}, 3\ns_cselect_b32 {sT1}, 24, 10\ns_cselect_b32 {sT2}, 48, 20\ns_cmp_ge_u32 {sJJ}, {sT2}\ns_cbranch_scc1 L_j2")
        e("v_lshrrev_b32 v52, 2, v56\nv_and_b32 v53, 3, v56\nv_cmp_eq_u32 vcc, v52, v57\nv_cndmask_b32 v50, -2, v53, vcc\nv_add_u32 v51, 4, v53\nv_cndmask_b32 v51, -2, v51, vcc")
        e("v_lshrrev_b32 v52, 3, v56\nv_and_b32 v53, 7, v56\nv_cmp_eq_u32 vcc, v52, v57\nv_cndmask_b32 v49, -2, v53, vcc")
        self.make_sel(32, "v50", 46)
        self.make_sel(36, "v51", 46)
        self.make_sel(52, "v49", 46)
        for n in range(2):
            for t in range(5):
                for a2 in range(2):
                    D = 64 + 40 * n + 8 * t + 4 * a2
                    P = (32, 36, 32, 36, 52)[t]
                    e(f"v_mfma_f32_16x16x32_bf16 {v(D,4)}, {a_(4*(6*n+3*a2+t//2),4)}, {v(P,4)}, 0")
        e(f"s_cmp_ge_u32 {sJP}, 3\ns_mov_b32 {sT2}, {100*1024}\ns_cselect_b32 {sT2}, {240*1024}, {sT2}\ns_mov_b32 {sT3}, {WO}\ns_cselect_b32 {sT3}, {WD}, {sT3}")
        e(f"s_mul_i32 {sT2}, {sT2}, {sXC}\ns_add_u32 {sT2}, {sT2}, {sT3}")
        for n in range(2):
            e(f"s_add_u32 {sT0}, {sJJ}, {n}\ns_cmp_ge_u32 {sT0}, {sT1}\ns_cselect_b32 {sT3}, {sT1}, 0\ns_cselect_b32 {sT4}, 1, 0")
            e(f"s_sub_u32 {sT0}, {sT0}, {sT3}\ns_mul_i32 {sT0}, {sT0}, 10\ns_add_u32 {sT0}, {sT0}, {sT4}\ns_lshl_b32 {sT0}, {sT0}, 10\ns_add_u32 {sT0}, {sT0}, {sT2}")
            for t in range(5):
                D = 64 + 40 * n + 8 * t
                for q in range(4):
                    e(f"v_cvt_pk_bf16_f32 {v(D+q)}, {v(D+2*q)}, {v(D+2*q+1)}")
                e(f"buffer_store_dwordx4 {v(D,4)}, {vL16}, {WS}, {sT0} offen offset:{2048*(t&1)} sc1")
                if t & 1: e(f"s_add_u32 {sT0}, {sT0}, 4096")
        e("L_j2:")
        e("s_waitcnt vmcnt(0)\ns_barrier")
        self.stamp("p0 drained")
        def f():
            e(f"s_add_u32 {sT0}, {sFI}, {FX}\nv_mov_b32 v44, 0")
            self.flag(vFJ4, sT0)
            self.flag("v44", sJF)
            self.poll("v43", "0", (1 << 34) - 1)
        self.w0(f)
        e("s_barrier")
        self.a.vm = []; self.a.lg = []
        self.ring.reset()
        for g in range(3): self.ring.issue(g)

    def colmean_xwave(self, r):
        e = self.e
        e(f"s_lshl_b32 {sT3}, {sWAVE}, 8\ns_add_u32 {sT3}, {sT3}, {SCR + 8192}\nv_add_u32 v46, {sT3}, {vL4}\nv_add_u32 v47, {SCR + 8192}, {vL4}")
        e(f"ds_write_b32 v46, {v(r)}\ns_waitcnt lgkmcnt(0)\ns_barrier")
        e(f"ds_read2st64_b32 v[40:41], v47 offset0:0 offset1:1\nds_read2st64_b32 v[44:45], v47 offset0:2 offset1:3\ns_waitcnt lgkmcnt(0)")
        e(f"v_pk_add_f32 v[40:41], v[40:41], v[44:45]\nv_add_f32 {v(r)}, v40, v41\nv_mul_f32 {v(r)}, 0xbacccccd, {v(r)}")

    def p1(self):
        e, a, r = self.e, self.a, self.ring
        self.stamp("P1 start")
        self.gemm32_begin(P1POS, 160, L_XIN)
        self.gemm32_pass(0, [ACC, ACC+16, ACC+32], True,
                         dma={7: 3, 22: 4, 37: 5, 52: 6, 67: 7, 91: 8, 106: 9}, stoff=L_STIN)
        self.stamp("passA end")
        a.wait(vm="st")
        self.stats()
        e(f"v_mul_f32 {v(C2)}, {hex(LOG2E)}, {v(RS)}\nv_mul_f32 {v(C2+1)}, {hex(LOG2E | 0x80000000)}, {v(RS)}")
        PK = 192
        for t in self.softmax_ops(ACC, lambda s, q: 10 * s + q, PK): e(t)
        for q in range(10):
            e(f"v_pk_mul_f32 {v(ACC+20+2*q,2)}, {v(ACC+20+2*q,2)}, {v(RS,2)} op_sel_hi:[1,0]")
        for q in range(10):
            e(f"v_cvt_pk_bf16_f32 {v(PK+20+q)}, {v(ACC+20+2*q)}, {v(ACC+21+2*q)}")
        e(f"v_mov_b32 {v(PK+30)}, 0x3f80\nv_mov_b32 {v(PK+31)}, 0")
        for c in range(8):
            if c == 0: e(f"ds_write_b128 {vTW}, {v(PK,4)}", "tw")
            else: e(f"v_xor_b32 {v(176+c)}, {16*c}, {vTW}\nds_write_b128 {v(176+c)}, {v(PK+4*c,4)}", "tw")
        a.wait(lg="tw")
        r.barrier()
        for ks in range(8):
            e(f"ds_read_b64_tr_b16 {v(128+4*ks,2)}, {vTA0} offset:{2048*ks}", ("tr", ks))
            e(f"ds_read_b64_tr_b16 {v(130+4*ks,2)}, {vTA1} offset:{2048*ks}", ("tr", ks))
            e(f"ds_read_b64_tr_b16 {v(192+4*ks,2)}, {vTB0} offset:{2048*ks}", ("tr", ks))
            e(f"ds_read_b64_tr_b16 {v(194+4*ks,2)}, {vTB1} offset:{2048*ks}", ("tr", ks))
            if ks >= 2:
                k2 = ks - 2
                a.wait(lg=("tr", k2))
                e(f"v_mfma_f32_32x32x16_bf16 v[160:175], {v(128+4*k2,4)}, {v(192+4*k2,4)}, {'0' if k2 == 0 else 'v[160:175]'}")
        for k2 in (6, 7):
            a.wait(lg=("tr", k2))
            e(f"v_mfma_f32_32x32x16_bf16 v[160:175], {v(128+4*k2,4)}, {v(192+4*k2,4)}, v[160:175]")
        fill = []
        for q in range(6):
            fill.append(f"v_cvt_pk_bf16_f32 {v(176+q)}, {v(160+2*q)}, {v(161+2*q)}")
        fill.append((f"buffer_store_dwordx2 v[176:177], {vP}, {WS}, {sPST} offen sc1", "part"))
        fill.append((f"buffer_store_dwordx2 v[178:179], {vP}, {WS}, {sPST} offen offset:384 sc1", "part"))
        fill.append((f"buffer_store_dwordx2 v[180:181], {vP2}, {WS}, {sPST} offen sc1", "part"))
        self.stamp("kv mfma")
        self.gemm32_pass(120, [ACC+48], False, dma={8: 11, 13: 12, 18: 13, 23: 14, 28: 15, 34: 16}, fill=fill, fill_rate=3, fill_start=1)
        self.stamp("passB end")
        a.wait(vm="part")
        r.barrier()
        def f():
            e(f"s_add_u32 {sT0}, {sFJ}, {F1}")
            self.flag(vFI4, sT0)
        self.w0(f)
        PQ = 192
        order = lambda s, q: (8 * s + q) if q < 8 else (16 + 2 * s + q - 8)
        for t in self.softmax_ops(ACC + 40, order, PQ): e(t)
        self.stamp("q softmax")
        self.sync(sFJ, F1, None, None, send=False)
        self.stamp("S1 done")
        for p in range(4):
            if p == 0: e(f"s_mov_b32 {sLD}, {sPLD}")
            else: e(f"s_add_u32 {sLD}, {sLD}, 16384")
            for q in range(4):
                e(f"buffer_load_dwordx4 {a_(16*p+4*q,4)}, {vR}, {WS}, {sLD} offen offset:{256*q} sc1", ("pl", p, q))
        r.issue(17); r.issue(18)
        for p in range(4):
            for q in range(4):
                a.wait(vm=("pl", p, q))
                e(f"v_mfma_f32_16x16x32_bf16 {v(128+4*q,4)}, {v(ASEL,4)}, {a_(16*p+4*q,4)}, {'0' if p == 0 else v(128+4*q,4)}")
        for q in range(4):
            e(f"v_cvt_pk_bf16_f32 {v(144+2*q)}, {v(128+4*q)}, {v(129+4*q)}\nv_cvt_pk_bf16_f32 {v(145+2*q)}, {v(130+4*q)}, {v(131+4*q)}")
        e("s_mov_b64 exec, 0xffffffff")
        for q in range(4):
            e(f"ds_write_b64 {vI}, {v(144+2*q,2)} offset:{256*q}", "img")
        e("s_mov_b64 exec, -1")
        a.wait(lg="img")
        r.barrier()
        e("s_mov_b32 exec_lo, 0x0f0f0f0f\ns_mov_b32 exec_hi, 0xf0f0f0f0")
        for kap in range(5):
            for mu in range(2):
                e(f"ds_read_b128 {a_(AF+20*mu+4*kap,4)}, {vA1 if mu else vA0} offset:{384*kap}", ("af", kap, mu))
        e("s_mov_b64 exec, -1")
        for kap in range(5):
            for mu in (1, 0):
                a.wait(lg=("af", kap, 1))
                N = ACC + 16 * mu
                e(f"v_mfma_f32_32x32x16_bf16 {v(N,16)}, {a_(AF+20*mu+4*kap,4)}, {v(PQ+4*kap,4)}, {'0' if kap == 0 else v(N,16)}")
        e(f"v_add_f32 {v(RR)}, 0x358637bd, {v(ACC+20)}\nv_rcp_f32 {v(RR)}, {v(RR)}")
        for q in (8, 9, 0, 1, 2, 3, 4, 5, 6, 7):
            e(f"v_pk_mul_f32 {v(ACC+2*q,2)}, {v(ACC+2*q,2)}, {v(RR,2)} op_sel_hi:[1,0]")
        for q in range(10):
            e(f"v_cvt_pk_bf16_f32 {v(128+q)}, {v(ACC+2*q)}, {v(ACC+2*q+1)}")
        e(f"buffer_store_dwordx4 v[128:131], {vL16}, {WS}, {sOST} offen sc1", "o")
        e(f"buffer_store_dwordx4 v[132:135], {vL16}, {WS}, {sOST} offen offset:1024 sc1", "o")
        e(f"buffer_store_dwordx2 v[136:137], {vO2}, {WS}, {sOST} offen offset:2048 sc1", "o")
        self.stamp("o stored")
        self.sync(sFI, F2, vFJ4, "o")

    def p2(self):
        self.stamp("P2 start")
        self.gemm16(P2POS, 10, sOLD, {31: 19, 41: 20})
        self.publish_x(L_XMID, L_STMID, "x1")
        self.stamp("x1 stored")
        self.sync(sFI, F3, vFJ4, "x1", pre=(21, 22, 23), post=(24, 25))

    def h_ops(self, acc, t, T):
        L = []
        for q in range(8): L.append(f"v_max_f32 {v(acc+q)}, 0, {v(acc+q)}")
        for q in range(4): L.append(f"v_pk_mul_f32 {v(acc+8+2*q,2)}, {v(acc+8+2*q,2)}, {v(C2,2)} op_sel_hi:[1,0]")
        for q in range(4): L.append(f"v_pk_mul_f32 {v(acc+2*q,2)}, {v(acc+2*q,2)}, {v(acc+8+2*q,2)}")
        for q in range(4): L.append(f"v_cvt_pk_bf16_f32 {v(T+q)}, {v(acc+2*q)}, {v(acc+2*q+1)}")
        if t == 4: L.append(f"s_add_u32 {sT2}, {sHST}, 4096")
        L.append((f"buffer_store_dwordx4 {v(T,4)}, {vL16}, {WS}, {sHST if t < 4 else sT2} offen offset:{(t%4)*1024} sc1", "h"))
        return L

    def p3(self):
        e, a, r = self.e, self.a, self.ring
        self.stamp("P3 start")
        self.gemm32_begin(P3POS, 240, L_XMID)
        self.gemm32_pass(0, [ACC, ACC+16, ACC+32], True, dma={37: 26, 67: 27, 97: 28}, stoff=L_STMID)
        self.stamp("P3 passA")
        a.wait(vm="st")
        self.stats()
        e(f"v_mul_f32 {v(C2)}, {v(RS)}, {v(RS)}")
        fill = []
        for t in range(3): fill += self.h_ops(ACC + 16 * t, t, 160 + 4 * t)
        self.gemm32_pass(120, [ACC+48, ACC+64], False,
                         dma={2: 29, 10: 30, 18: 31, 26: 32, 34: 33, 44: 34, 52: 35, 62: 36, 75: 37}, fill=fill, fill_rate=2)
        self.stamp("P3 passB")
        fill = []
        for t in (3, 4): fill += self.h_ops(ACC + 16 * t, t, 160 + 4 * t)
        self.gemm32_pass(200, [ACC+80], False, dma={14: 38, 30: 39}, fill=fill, fill_rate=2)
        for f in self.h_ops(ACC + 80, 5, 180):
            if isinstance(f, tuple): e(*f)
            else: e(f)
        self.stamp("h stored")
        self.sync(sFI, F4, vFJ4, "h", post=(40,))

    def p4(self):
        e, a, r = self.e, self.a, self.ring
        self.stamp("P4 start")
        self.gemm16(P4POS, 24, sHLD, {31: 41, 39: 42, 47: 43, 55: 44, 63: 45, 71: 46, 79: 47})
        self.stamp("P4 end")
        e(f"s_cmp_eq_u32 {sLAYER}, 1\ns_cbranch_scc1 L_final")
        self.publish_x(LSTRIDE + L_XIN, LSTRIDE + L_STIN, "x2")
        self.sync(sFI, LSTRIDE + FX, vFJ4, "x2", pre=(48, 49, 50))
        for s in LAYER_REGS: e(f"s_add_u32 {s}, {s}, {LSTRIDE}")
        e(f"s_add_u32 {sLAYER}, {sLAYER}, 1\ns_branch L_layer")
        e("L_final:")
        P = 128
        for q in range(10):
            e(f"v_cvt_pk_bf16_f32 {v(P+q)}, {v(RES+2*q)}, {v(RES+2*q+1)}")
        e(f"buffer_store_dwordx4 {v(P,4)}, {vRM}, {OUT}, 0 offen")
        e(f"buffer_store_dwordx4 {v(P+4,4)}, {vRM}, {OUT}, 0 offen offset:64")
        e(f"buffer_store_dwordx2 {v(P+8,2)}, {vRM2}, {OUT}, 0 offen")
        e(f"s_or_b32 {sT0}, s2, {sWAVE}\ns_cmp_lg_u32 {sT0}, 0\ns_cbranch_scc1 L_done")
        e(f"v_mov_b32 {vT}, 0\ns_mov_b64 exec, 1\nbuffer_store_dword {vNON}, {vT}, {WS}, 0 offen sc1\ns_mov_b64 exec, -1")
        e("L_done:")
        self.stamp("end")
        if self.ts:
            e(f"s_lshl_b32 s91, s2, 9\ns_add_u32 s91, s91, {TSOFF + 504}\nv_mov_b32 {vT}, s94\nbuffer_store_dword {vT}, off, {WS}, s91")

    def build(self):
        a = self.a
        hdr = open(os.path.join(os.path.dirname(os.path.abspath(__file__)), "..", "cdna_kernels", NAME + ".s.ref")).read()
        head = [l for l in hdr.split("\n") if l.startswith(";") and "@launch" not in l and "Override" not in l and "grid=ceil" not in l]
        for l in head: a.raw(l)
        a.raw(f"; @launch grid=(256,1,1) block=(256,1,1) lds={LDS_BYTES}")
        a.raw('.amdgcn_target "amdgcn-amd-amdhsa--gfx950"\n.text')
        a.raw(f".globl {NAME}_kernel\n.p2align 8\n.type {NAME}_kernel,@function\n{NAME}_kernel:")
        self.prologue()
        a.e("s_nop 7\ns_nop 7")
        a.label("L_layer")
        head_vm = list(a.vm)
        self.p1(); self.p2(); self.p3(); self.p4()
        a.label("L_exit")
        a.e("s_endpgm")
        a.raw('.section .rodata,"a"\n.p2align 6')
        a.raw(f".amdhsa_kernel {NAME}_kernel")
        a.raw("  .amdhsa_next_free_vgpr 512\n  .amdhsa_next_free_sgpr 102\n  .amdhsa_accum_offset 256\n  .amdhsa_group_segment_fixed_size 0")
        a.raw("  .amdhsa_kernarg_size 88\n  .amdhsa_user_sgpr_count 2\n  .amdhsa_user_sgpr_kernarg_segment_ptr 1\n  .amdhsa_system_sgpr_workgroup_id_x 1")
        a.raw(".end_amdhsa_kernel")
        return a.text()


if __name__ == "__main__":
    import argparse
    ap = argparse.ArgumentParser()
    ap.add_argument("-o", default=os.path.join(os.path.dirname(os.path.abspath(__file__)), "..", "cdna_kernels", NAME + ".s"))
    ap.add_argument("--ts", action="store_true")
    ap.add_argument("--map", default="R4")
    args = ap.parse_args()
    k = K(ts=args.ts, mapping=args.map)
    txt = k.build()
    open(args.o, "w").write(txt)
    print("instructions:", k.a.ninstr, "nops:", k.a.nops, "ws bytes:", WS_SIZE)
```

```python
import sys, os
sys.path.insert(0, os.path.dirname(os.path.abspath(__file__)))
from asmlib import Asm

NAME = "interleave_layers__linear_kernel_hedgehog__glu_gated_reglu__prompt"

NONCE = 0
FW = 4096
WQ = 65536
WO = WQ + 16 * 160 * 1024
WGU = WO + 8 * 100 * 1024
WD = WGU + 16 * 240 * 1024
LB0 = WD + 8 * 240 * 1024
XSZ = 64 * 40960
L_XIN = 0
L_XMID = L_XIN + XSZ
L_O = L_XMID + XSZ
L_H = L_O + XSZ
L_PART = L_H + 64 * 98304
L_STIN = L_PART + 16 * 16 * 4096
L_STMID = L_STIN + 64 * 2048
L_FL = L_STMID + 64 * 2048
LSTRIDE = L_FL + 5 * 2048 + 6144
TSOFF = LB0 + 2 * LSTRIDE
WS_SIZE = TSOFF + 256 * 512
FX, F1, F2, F3, F4 = [k * 2048 for k in range(5)]
BIG = 0x40000000

SCR = 131072
LDS_BYTES = 163840

P1POS, P2POS, P3POS, P4POS, ENDPOS = 0, 188, 288, 528, 768

WS, OUT, SA, SB, SX = "s[4:7]", "s[8:11]", "s[12:15]", "s[36:39]", "s[40:43]"
sWAVE, sI, sJ, sC, sTH2, sTH, sKH, sW4K = ["s%d" % k for k in range(44, 52)]
sWQ, sWO, sWG, sWD = ["s%d" % k for k in range(52, 56)]
sXLD, sSTLD, sXST, sSTST, sOST, sOLD, sHST, sHLD, sPST, sPLD, sFI, sFJ = ["s%d" % k for k in range(56, 68)]
LAYER_REGS = [sXLD, sSTLD, sXST, sSTST, sOST, sOLD, sHST, sHLD, sPST, sPLD, sFI, sFJ]
sLAYER, sBUD, sNONCE = "s68", "s69", "s70"
sT0, sT1, sT2, sT3, sT4, sT5 = ["s%d" % k for k in range(71, 77)]
sM = "s[78:79]"; sMlo, sMhi = "s78", "s79"
sJOB, sJJ, sJP, sJF, sXC = "s80", "s81", "s82", "s83", "s84"
sDM = "s85"
sLD = "s86"
sTS = "s[88:89]"

vLANE, vL16, vL16H, vWK, vWKH, vK, vS, vXS2, vSS, vSL, vRM, vRM2 = ["v%d" % k for k in range(0, 12)]
RES = 12
WF = 32
ACC = 64
(vTW, vTA0, vTA1, vTB0, vTB1, vP, vP2, vR, vI, vA0, vA1, vO2, vNON, vFJ4, vFI4, vL4, vRedW, vRedR) = \
    ["v%d" % k for k in range(232, 250)]
vT, vU = "v250", "v251"
ASEL = 252
AF = 216
C2, BP, RS, RR = 224, 226, 228, 230
STR = 184

def v(b, n=1): return f"v{b}" if n == 1 else f"v[{b}:{b+n-1}]"
def a_(b, n=1): return f"a{b}" if n == 1 else f"a[{b}:{b+n-1}]"

LOG2E = 0x3FB8AA3B


class Ring:
    def __init__(self, a):
        self.a = a
        self.reset()
    def reset(self):
        self.issued = []; self.landed = set(); self.consumed = 0; self.read_upto = 0
    def src(self, g):
        p = (16 * g) % ENDPOS
        if p < 160: return sWQ, p * 1024
        if p < P3POS: return sWO, (p - P2POS) * 1024
        if p < P4POS: return sWG, (p - P3POS) * 1024
        return sWD, (p - P4POS) * 1024
    def chunks(self, g):
        need = 16 * (g - 8) + 16
        if self.consumed < need:
            self.barrier()
        assert self.consumed >= need, (g, self.consumed, need)
        assert g not in self.issued
        self.issued.append(g)
        base, off = self.src(g)
        op = f"s_add_u32 {sDM}, {base}, {off}" if off >= 0 else f"s_sub_u32 {sDM}, {base}, {-off}"
        ld = lambda k: (f"buffer_load_dwordx4 {vL16}, {WS}, {sDM} offen offset:{k*1024} sc1 lds", ("g", g))
        return [[(f"s_add_u32 m0, {sW4K}, {(g % 8) * 16384}", None), (op, None), ld(0)], [ld(1)], [ld(2)], [ld(3)]]
    def issue(self, g):
        for ch in self.chunks(g):
            for t, tag in ch: self.a.e(t, tag)
    def note_barrier(self):
        a = self.a
        for g in self.issued:
            if not a.pending_vm(("g", g)) and g not in self.inflight_partial: self.landed.add(g)
        c = self.read_upto
        for t in a.lg:
            if isinstance(t, tuple) and t[0] == "w": c = min(c, t[1])
        if 160 <= c < P2POS: c = P2POS
        self.consumed = max(self.consumed, c)
    inflight_partial = set()
    def barrier(self, g=None):
        if g is not None:
            assert g in self.issued and g not in self.inflight_partial, g
            self.a.wait(vm=("g", g))
        self.a.e("s_barrier")
        self.note_barrier()
    def read(self, pos, dst, pair=False):
        g = pos // 16
        if g not in self.landed:
            self.barrier(g)
        assert g in self.landed
        off = (pos % 128) * 1024
        lo, hi = (vWK, vWKH) if pair else (vL16, vL16H)
        self.a.e(f"ds_read_b128 {v(dst,4)}, {lo if off < 65536 else hi} offset:{off % 65536}", ("w", pos))
        self.read_upto = pos + (2 if pair else 1)


class K:
    def __init__(self, ts=False, mapping="R4", cfg=None):
        self.a = Asm(); self.ring = Ring(self.a); self.ts = ts; self.mapping = mapping
        self.nlab = 0; self.nts = 0; self.tsnames = []
        self.cfg = dict(XL=10, LA=4, AL=5)
        if cfg: self.cfg.update(cfg)
    def e(self, t, tag=None): self.a.e(t, tag)
    def lab(self, p="L"):
        self.nlab += 1
        return f"{p}_{self.nlab}"

    def stamp(self, name):
        if not self.ts: return
        idx = self.nts; self.nts += 1; self.tsnames.append(name)
        assert idx < 32
        l = self.lab("Lts")
        sv_vm = list(self.a.vm); sv_lg = list(self.a.lg)
        self.e(f"s_cmp_lg_u32 {sWAVE}, 0\ns_cbranch_scc1 {l}")
        self.e(f"s_memrealtime s[88:89]\ns_memtime s[92:93]\ns_lshl_b32 s90, {sLAYER}, 8\ns_lshl_b32 s91, s2, 9\ns_add_u32 s90, s90, s91\ns_add_u32 s90, s90, {TSOFF + 8*idx}")
        self.e(f"s_waitcnt lgkmcnt(0)\nv_mov_b32 {vT}, s88\nv_mov_b32 {vU}, s92\ns_mov_b64 exec, 1")
        self.e(f"buffer_store_dwordx2 v[250:251], off, {WS}, s90\ns_mov_b64 exec, -1")
        self.e(l + ":")
        self.a.vm = sv_vm; self.a.lg = sv_lg

    def srd(self, dst, plo, size):
        b = int(dst[2:dst.index(":")])
        self.e(f"s_mov_b32 s{b}, s{plo}\ns_and_b32 s{b+1}, s{plo+1}, 0xffff\ns_mov_b32 s{b+2}, {size}\ns_mov_b32 s{b+3}, 0x20000")

    def make_sel(self, dst, est, tmp):
        self.e(f"v_and_b32 {v(tmp)}, 1, {est}\nv_lshlrev_b32 {v(tmp)}, 4, {v(tmp)}\nv_mov_b32 {v(tmp+1)}, 0x3f80")
        self.e(f"v_lshlrev_b32 {v(tmp)}, {v(tmp)}, {v(tmp+1)}\nv_ashrrev_i32 {v(tmp+1)}, 1, {est}")
        for q in range(4):
            self.e(f"v_cmp_eq_u32 vcc, {q}, {v(tmp+1)}\nv_cndmask_b32 {v(dst+q)}, 0, {v(tmp)}, vcc")

    def pk_sum(self, src, n, tmp):
        h = n // 2
        self.e(f"v_pk_add_f32 {v(tmp,2)}, {v(src,2)}, {v(src+2,2)}")
        self.e(f"v_pk_add_f32 {v(tmp+2,2)}, {v(src+4,2)}, {v(src+6,2)}")
        for q in range(4, h):
            t = tmp + 2 * (q & 1)
            self.e(f"v_pk_add_f32 {v(t,2)}, {v(t,2)}, {v(src+2*q,2)}")
        self.e(f"v_pk_add_f32 {v(tmp,2)}, {v(tmp,2)}, {v(tmp+2,2)}")
        self.e(f"v_add_f32 {v(tmp)}, {v(tmp)}, {v(tmp+1)}")

    def poll(self, addr, soff, mask, after_first=None):
        l, le = self.lab("Lpoll"), self.lab("Lpolle")
        if mask < (1 << 32): self.e(f"s_mov_b64 exec, {hex(mask)}")
        else: self.e(f"s_mov_b32 exec_lo, {hex(mask & 0xffffffff)}\ns_mov_b32 exec_hi, {hex(mask >> 32)}")
        self.e(l + ":")
        self.e(f"buffer_load_dword {vT}, {addr}, {WS}, {soff} offen sc1")
        self.e(f"s_sub_u32 {sBUD}, {sBUD}, 1\ns_cselect_b32 {sBUD}, 0, {sBUD}\ns_cbranch_scc1 {le}")
        self.e(f"s_waitcnt vmcnt(0)\nv_cmp_ne_u32 vcc, {sNONCE}, {vT}\ns_cbranch_vccnz {l}")
        self.e(le + ":")
        self.e("s_waitcnt vmcnt(0)\ns_mov_b64 exec, -1")

    def flag(self, addr, soff):
        self.e(f"s_mov_b64 exec, 1\nbuffer_atomic_swap {vNON}, {addr}, {WS}, {soff} offen sc1\ns_mov_b64 exec, -1")

    def w0(self, fn):
        l = self.lab("Lw0")
        sv = list(self.a.vm)
        self.e(f"s_cmp_lg_u32 {sWAVE}, 0\ns_cbranch_scc1 {l}")
        fn()
        self.e(l + ":")
        self.a.vm = sv

    def sync(self, sreg, foff, own, sttag, pre=(), post=(), send=True):
        r = self.ring
        for g in pre: r.issue(g)
        if send:
            self.a.wait(vm=sttag)
            r.barrier()
        def f():
            self.e(f"s_add_u32 {sT0}, {sreg}, {foff}")
            if send: self.flag(own, sT0)
            self.poll(vL4, sT0, 0xffff)
        if post:
            l, l2 = self.lab("Lsa"), self.lab("Lsb")
            sv = list(self.a.vm)
            self.e(f"s_cmp_eq_u32 {sWAVE}, 0\ns_cbranch_scc0 {l}")
            f()
            self.e(l + ":")
            self.a.vm = sv
            for g in post: r.issue(g)
        else:
            self.w0(f)
        r.barrier()

    def stats(self):
        self.pk_sum(STR, 8, 168)
        self.e(f"v_mov_b32 v169, v168\nv_permlane32_swap_b32 v168, v169")
        self.e(f"v_mul_f32 v168, 0x3acccccd, v168\nv_mul_f32 v169, 0x3acccccd, v169")
        self.e(f"v_fma_f32 v169, -v168, v168, v169\nv_max_f32 v169, 0, v169\nv_add_f32 v169, 0x3727c5ac, v169")
        self.e(f"v_rsq_f32 {v(RS)}, v169")

    def publish_x(self, xoff, stoff, tag):
        P = 128
        for q in range(10):
            self.e(f"v_cvt_pk_bf16_f32 {v(P+q)}, {v(RES+2*q)}, {v(RES+2*q+1)}")
        self.e(f"s_add_u32 {sT0}, {sXST}, {xoff}\ns_add_u32 {sT1}, {sSTST}, {stoff}")
        self.e(f"buffer_store_dwordx4 {v(P,4)}, {vK}, {WS}, {sT0} offen sc1", tag)
        self.e(f"buffer_store_dwordx4 {v(P+4,4)}, {vK}, {WS}, {sT0} offen offset:2048 sc1", tag)
        self.e(f"buffer_store_dwordx2 {v(P+8,2)}, {vXS2}, {WS}, {sT0} offen sc1", tag)
        T = 140
        self.e(f"v_pk_mul_f32 {v(T+4,2)}, {v(RES,2)}, {v(RES,2)}")
        self.e(f"v_pk_mul_f32 {v(T+6,2)}, {v(RES+2,2)}, {v(RES+2,2)}")
        for q in range(2, 10):
            t = T + 4 + 2 * (q & 1)
            self.e(f"v_pk_fma_f32 {v(t,2)}, {v(RES+2*q,2)}, {v(RES+2*q,2)}, {v(t,2)}")
        self.pk_sum(RES, 20, T)
        self.e(f"v_pk_add_f32 {v(T+4,2)}, {v(T+4,2)}, {v(T+6,2)}\nv_add_f32 {v(T+1)}, {v(T+4)}, {v(T+5)}")
        self.e(f"v_permlane32_swap_b32 {v(T)}, {v(T+1)}\nv_add_f32 {v(T)}, {v(T)}, {v(T+1)}\nv_mov_b32 {v(T+1)}, {v(T)}")
        self.e(f"v_permlane16_swap_b32 {v(T)}, {v(T+1)}\nv_add_f32 {v(T)}, {v(T)}, {v(T+1)}")
        self.e(f"buffer_store_dword {v(T)}, {vSS}, {WS}, {sT1} offen sc1", tag)

    def softmax_ops(self, S, order, PK):
        EP, EN, T = 128, 148, 168
        L = []
        L.append(f"v_max3_f32 {v(T)}, {v(S)}, {v(S+1)}, {v(S+2)}")
        L.append(f"v_min3_f32 {v(T+1)}, {v(S)}, {v(S+1)}, {v(S+2)}")
        L.append(f"v_max3_f32 {v(T+2)}, {v(S+3)}, {v(S+4)}, {v(S+5)}")
        L.append(f"v_min3_f32 {v(T+3)}, {v(S+3)}, {v(S+4)}, {v(S+5)}")
        for q in range(7):
            o = 2 * (q & 1)
            L.append(f"v_max3_f32 {v(T+o)}, {v(T+o)}, {v(S+6+2*q)}, {v(S+7+2*q)}")
            L.append(f"v_min3_f32 {v(T+o+1)}, {v(T+o+1)}, {v(S+6+2*q)}, {v(S+7+2*q)}")
        L.append(f"v_max_f32 {v(T)}, {v(T)}, {v(T+2)}")
        L.append(f"v_min_f32 {v(T+1)}, {v(T+1)}, {v(T+3)}")
        L.append(f"v_mul_f32 {v(BP)}, {v(T)}, {v(C2+1)}")
        L.append(f"v_mul_f32 {v(BP+1)}, {v(T+1)}, {v(C2)}")
        for q in range(10):
            L.append(f"v_pk_fma_f32 {v(EP+2*q,2)}, {v(S+2*q,2)}, {v(C2,2)}, {v(BP,2)} op_sel_hi:[1,0,0]")
            L.append(f"v_pk_fma_f32 {v(EN+2*q,2)}, {v(S+2*q,2)}, {v(C2,2)}, {v(BP,2)} op_sel:[0,1,1] op_sel_hi:[1,1,1]")
        for q in range(40):
            L.append(f"v_exp_f32 {v(EP+q)}, {v(EP+q)}")
        for s, E in ((0, EP), (1, EN)):
            t = T + 4 * s
            L.append(f"v_pk_add_f32 {v(t,2)}, {v(E,2)}, {v(E+2,2)}")
            L.append(f"v_pk_add_f32 {v(t+2,2)}, {v(E+4,2)}, {v(E+6,2)}")
        for q in range(4, 10):
            for s, E in ((0, EP), (1, EN)):
                t = T + 4 * s + 2 * (q & 1)
                L.append(f"v_pk_add_f32 {v(t,2)}, {v(t,2)}, {v(E+2*q,2)}")
        for s in (0, 1):
            t = T + 4 * s
            L.append(f"v_pk_add_f32 {v(t,2)}, {v(t,2)}, {v(t+2,2)}")
        for s in (0, 1):
            t = T + 4 * s
            L.append(f"v_add_f32 {v(t)}, {v(t)}, {v(t+1)}")
        L.append(f"v_rcp_f32 {v(RR)}, {v(T)}")
        L.append(f"v_rcp_f32 {v(RR+1)}, {v(T+4)}")
        for q in range(10):
            L.append(f"v_pk_mul_f32 {v(EP+2*q,2)}, {v(EP+2*q,2)}, {v(RR,2)} op_sel_hi:[1,0]")
        for q in range(10):
            L.append(f"v_pk_mul_f32 {v(EN+2*q,2)}, {v(EN+2*q,2)}, {v(RR,2)} op_sel:[0,1] op_sel_hi:[1,1]")
        for s, E in ((0, EP), (1, EN)):
            for q in range(10):
                L.append(f"v_cvt_pk_bf16_f32 {v(PK+order(s,q))}, {v(E+2*q)}, {v(E+2*q+1)}")
        return L

    def gemm32_begin(self, pos0, total, xoff):
        XL, LA = self.cfg["XL"], self.cfg["LA"]
        self.g_pos0, self.g_total, self.g_rd, self.g_xn = pos0, total, 0, 0
        self.e(f"s_add_u32 {sLD}, {sXLD}, {xoff}")
        for s in range(XL): self.xload()
        for n in range(LA): self.g_read()
    def xload(self):
        s = self.g_xn
        if s >= 40: return False
        if s and s % 4 == 0: self.e(f"s_add_u32 {sLD}, {sLD}, 4096")
        self.e(f"buffer_load_dwordx4 {a_(4*s,4)}, {vL16}, {WS}, {sLD} offen offset:{(s%4)*1024} sc1", ("x", s))
        self.g_xn += 1
        return True
    def g_read(self):
        n = self.g_rd
        if n >= self.g_total: return
        self.ring.read(self.g_pos0 + n, WF + 4 * (n % 8))
        self.g_rd += 1
    def gemm32_pass(self, n0, tiles, first, dma=None, fill=None, stoff=None, fill_rate=1, fill_start=3):
        a, r = self.a, self.ring
        dma = dict(dma or {}); fill = list(fill or [])
        pend = []; stn = 0
        nt = len(tiles)
        for s in range(40):
            for ti, acc in enumerate(tiles):
                k = s * nt + ti; n = n0 + k
                self.g_read()
                tagw = ("w", self.g_pos0 + n)
                vmt = ("x", s) if (first and ti == 0) else None
                lgt = None
                if a.pending_lg(tagw):
                    nxt = ("w", self.g_pos0 + n + 1)
                    lgt = nxt if a.pending_lg(nxt) else tagw
                a.wait(vm=vmt, lg=lgt)
                c = "0" if s == 0 else v(acc, 16)
                self.e(f"v_mfma_f32_32x32x16_bf16 {v(acc,16)}, {v(WF+4*(n%8),4)}, {a_(4*s,4)}, {c}")
                if first and ti == 0:
                    if not self.xload() and stoff is not None and stn < 8:
                        if stn == 0: self.e(f"s_add_u32 {sLD}, {sSTLD}, {stoff}")
                        self.e(f"buffer_load_dword {v(STR+stn)}, {vSL}, {WS}, {sLD} offen offset:{stn*256} sc1", "st")
                        stn += 1
                if k in dma:
                    g = dma.pop(k)
                    pend += [(g, ch) for ch in r.chunks(g)]
                    r.inflight_partial = set(x[0] for x in pend)
                if pend and not (first and ti == 0):
                    g, ch = pend.pop(0)
                    for t, tag in ch: self.e(t, tag)
                    r.inflight_partial = set(x[0] for x in pend)
                elif fill and k >= fill_start:
                    for _ in range(fill_rate):
                        if fill:
                            f = fill.pop(0)
                            if isinstance(f, tuple): self.e(*f)
                            else: self.e(f)
        assert not dma and not pend
        assert stoff is None or stn == 8
        for f in fill:
            if isinstance(f, tuple): self.e(*f)
            else: self.e(f)

    def gemm16(self, pos0, R, sbase, dma):
        a, r = self.a, self.ring
        AL = self.cfg["AL"]; LA = 6
        dma = dict(dma); pend = []
        st = dict(ld=0, rd=0)
        def aload():
            q = st["ld"]
            if q >= R: return
            if q == 0: self.e(f"s_mov_b32 {sLD}, {sbase}")
            elif q % 2 == 0: self.e(f"s_add_u32 {sLD}, {sLD}, 4096")
            self.e(f"buffer_load_dwordx4 {a_(8*q,4)}, {vK}, {WS}, {sLD} offen offset:{(q%2)*2048} sc1", ("x", q))
            self.e(f"buffer_load_dwordx4 {a_(8*q+4,4)}, {vS}, {WS}, {sLD} offen offset:{(q%2)*2048} sc1", ("x", q))
            st["ld"] += 1
        def wread():
            n = st["rd"]
            if n >= 5 * R: return
            r.read(pos0 + 2 * n, WF + 4 * (n % 8), pair=True)
            st["rd"] += 1
        for q in range(min(AL, R)): aload()
        for n in range(LA): wread()
        for q in range(R):
            for t in range(5):
                n = 5 * q + t
                tagw = ("w", pos0 + 2 * n)
                lgt = None
                if a.pending_lg(tagw):
                    nxt = ("w", pos0 + 2 * n + 2)
                    lgt = nxt if a.pending_lg(nxt) else tagw
                a.wait(vm=("x", q) if t == 0 else None, lg=lgt)
                for lam in (0, 1):
                    acc = ACC + 20 * lam + 4 * t
                    c = "0" if q == 0 else v(acc, 4)
                    self.e(f"v_mfma_f32_16x16x32_bf16 {v(acc,4)}, {v(WF+4*(n%8),4)}, {a_(8*q+4*lam,4)}, {c}")
                    if lam == 0: wread()
                if t == 0: aload()
                if n in dma:
                    g = dma.pop(n)
                    pend += [(g, ch) for ch in r.chunks(g)]
                    r.inflight_partial = set(x[0] for x in pend)
                if pend and t != 0:
                    g, ch = pend.pop(0)
                    for tx, tag in ch: self.e(tx, tag)
                    r.inflight_partial = set(x[0] for x in pend)
        assert not dma and not pend
        for t in range(5):
            self.e(f"ds_write_b128 {vRedW}, {v(ACC+20+4*t,4)} offset:{t*1024}", "red")
        for q in range(10):
            self.e(f"v_pk_add_f32 {v(RES+2*q,2)}, {v(RES+2*q,2)}, {v(ACC+2*q,2)}")
        a.wait(lg="red")
        r.barrier()
        for t in range(5):
            self.e(f"ds_read_b128 {v(ACC+40+4*t,4)}, {vRedR} offset:{t*1024}", ("rr", t))
        for t in range(5):
            a.wait(lg=("rr", t))
            for h in (0, 1):
                q = 2 * t + h
                self.e(f"v_pk_add_f32 {v(RES+2*q,2)}, {v(RES+2*q,2)}, {v(ACC+40+2*q,2)}")

    def prologue(self):
        e = self.e
        e("s_cmp_ge_u32 s2, 256\ns_cbranch_scc1 L_exit")
        if self.ts: e("s_memrealtime s[94:95]")
        if self.cfg.get("codepf"):
            e(f"s_cmp_lt_u32 s2, {self.cfg['codepf']}\ns_cbranch_scc1 L_nopf\ns_getpc_b64 s[44:45]\nv_lshlrev_b32 v1, 4, v0")
            for q in range(9):
                e(f"global_load_dwordx4 v[64:67], v1, s[44:45]\nv_add_u32 v1, 0x1000, v1")
            e("L_nopf:")
        e("s_load_dwordx16 s[16:31], s[0:1], 0\ns_load_dwordx2 s[32:33], s[0:1], 64\ns_load_dwordx2 s[34:35], s[0:1], 80")
        e(f"v_lshrrev_b32 v1, 6, v0\nv_and_b32 {vLANE}, 63, v0\nv_readfirstlane_b32 {sWAVE}, v1")
        e(f"s_and_b32 {sXC}, s2, 7\ns_lshr_b32 {sJOB}, s2, 3")
        if self.mapping == "R4":
            e(f"s_lshr_b32 {sT0}, {sXC}, 1\ns_lshl_b32 {sT0}, {sT0}, 2\ns_and_b32 {sT1}, {sJOB}, 3\ns_add_u32 {sI}, {sT0}, {sT1}")
            e(f"s_and_b32 {sT0}, {sXC}, 1\ns_lshl_b32 {sT0}, {sT0}, 3\ns_lshr_b32 {sT1}, {sJOB}, 2\ns_add_u32 {sJ}, {sT0}, {sT1}")
        elif self.mapping == "R8":
            e(f"s_lshl_b32 {sT0}, {sXC}, 1\ns_and_b32 {sT1}, {sJOB}, 1\ns_add_u32 {sI}, {sT0}, {sT1}\ns_lshr_b32 {sJ}, {sJOB}, 1")
        elif self.mapping == "R2":
            e(f"s_lshr_b32 {sT0}, {sXC}, 2\ns_lshl_b32 {sT0}, {sT0}, 3\ns_and_b32 {sT1}, {sJOB}, 7\ns_add_u32 {sI}, {sT0}, {sT1}")
            e(f"s_and_b32 {sT0}, {sXC}, 3\ns_lshl_b32 {sT0}, {sT0}, 2\ns_lshr_b32 {sT1}, {sJOB}, 3\ns_add_u32 {sJ}, {sT0}, {sT1}")
        if self.mapping == "R2":
            e(f"s_lshr_b32 {sC}, {sJ}, 1\ns_and_b32 {sTH2}, {sJ}, 1")
        else:
            e(f"s_lshr_b32 {sT0}, {sJ}, 3\ns_lshl_b32 {sT0}, {sT0}, 2\ns_and_b32 {sT1}, {sJ}, 3\ns_add_u32 {sC}, {sT0}, {sT1}")
            e(f"s_lshr_b32 {sTH2}, {sJ}, 2\ns_and_b32 {sTH2}, {sTH2}, 1")
        e(f"s_and_b32 {sTH}, {sWAVE}, 1\ns_lshr_b32 {sKH}, {sWAVE}, 1\ns_lshl_b32 {sW4K}, {sWAVE}, 12")
        e(f"s_mov_b32 {sLAYER}, 0\ns_mov_b32 {sBUD}, 0x20000")
        e(f"v_lshlrev_b32 {vL16}, 4, {vLANE}\nv_and_b32 v56, 15, {vLANE}\nv_lshrrev_b32 v57, 4, {vLANE}")
        e(f"v_and_b32 v58, 31, {vLANE}\nv_lshrrev_b32 v59, 5, {vLANE}")
        e(f"s_lshl_b32 {sT0}, {sI}, 2\ns_lshl_b32 {sT1}, {sTH2}, 1\ns_add_u32 {sT0}, {sT0}, {sT1}\ns_add_u32 {sT5}, {sT0}, {sTH}")
        e(f"s_lshl_b32 {sT0}, {sT5}, 5\ns_lshl_b32 {sT1}, {sKH}, 4\ns_add_u32 {sT0}, {sT0}, {sT1}")
        e(f"s_mul_i32 {sT0}, {sT0}, 1280\ns_mul_i32 {sT1}, {sC}, 160\ns_add_u32 {sT0}, {sT0}, {sT1}")
        e(f"v_mul_u32_u24 v60, 1280, v56\nv_add_u32 v60, {sT0}, v60")
        e(f"v_lshl_add_u32 {vRM}, v57, 4, v60\nv_lshl_add_u32 {vRM2}, v57, 3, v60\nv_add_u32 {vRM2}, 128, {vRM2}")
        e("s_waitcnt lgkmcnt(0)")
        self.srd(WS, 34, WS_SIZE)
        self.srd(SX, 16, 2048 * 1280)
        e(f"v_mov_b32 {vT}, 0")
        e(f"buffer_load_dwordx4 v[224:227], {vRM}, {SX}, 0 offen")
        e(f"buffer_load_dwordx4 v[228:231], {vRM}, {SX}, 0 offen offset:64")
        e(f"buffer_load_dwordx2 v[62:63], {vRM2}, {SX}, 0 offen")
        e(f"buffer_load_dword {vNON}, {vT}, {WS}, 0 offen sc1")
        self.srd(OUT, 32, 2048 * 1280)
        e("v_lshrrev_b32 v60, 4, v58\nv_lshlrev_b32 v60, 4, v60\nv_bfe_u32 v61, v58, 2, 1\nv_lshl_add_u32 v60, v61, 3, v60")
        e("v_bfe_u32 v61, v58, 3, 1\nv_lshl_add_u32 v60, v61, 2, v60\nv_and_b32 v61, 3, v58\nv_add_u32 v60, v60, v61")
        e(f"s_mov_b32 {sJF}, {FW + 24*128}")
        e(f"s_cmp_lt_u32 {sJOB}, 6\ns_cbranch_scc1 L_q1\ns_cmp_lt_u32 {sJOB}, 18\ns_cbranch_scc1 L_g1\ns_cmp_lt_u32 {sJOB}, 27\ns_cbranch_scc1 L_c1")
        e("s_branch L_j1")
        e("L_q1:")
        e(f"s_cmp_ge_u32 {sJOB}, 3\ns_cselect_b32 {sT0}, 1, 0\ns_lshl_b32 {sJJ}, {sXC}, 1\ns_add_u32 {sJJ}, {sJJ}, {sT0}")
        e(f"s_mul_i32 {sT0}, {sT0}, 3\ns_sub_u32 {sJP}, {sJOB}, {sT0}")
        e(f"s_add_u32 {sT0}, {sJP}, 1\ns_cmp_eq_u32 {sT0}, 3\ns_cselect_b32 {sT0}, 0, {sT0}")
        e(f"s_mul_i32 {sT0}, {sT0}, 1280\ns_mul_i32 {sT1}, {sJJ}, 80\ns_add_u32 {sT0}, {sT0}, {sT1}")
        e(f"s_mul_i32 {sT1}, {sWAVE}, {160*3840}\ns_add_u32 {sT0}, {sT0}, {sT1}")
        self.srd(SA, 18, 640 * 3840)
        self.srd(SB, 20, 25600)
        e("v_mul_u32_u24 v61, 3840, v60\nv_lshl_add_u32 v61, v59, 4, v61")
        for T in range(5):
            for kp in range(3):
                e(f"buffer_load_dwordx4 {a_(4*(3*T+kp),4)}, v61, {SA}, {sT0} offen offset:{32*kp}")
            if T < 4: e(f"s_add_u32 {sT0}, {sT0}, {32*3840}")
        e(f"s_lshl_b32 {sT1}, {sWAVE}, 11\ns_add_u32 m0, {sT1}, {SCR}\ns_mul_i32 {sT1}, {sJJ}, 1600")
        e(f"buffer_load_dwordx4 {vL16}, {SB}, {sT1} offen lds")
        e(f"buffer_load_dwordx4 {vL16}, {SB}, {sT1} offen offset:1024 lds")
        e(f"s_lshl_b32 {sJF}, {sJJ}, 7\ns_lshl_b32 {sT0}, {sJP}, 2\ns_add_u32 {sJF}, {sJF}, {sT0}\ns_add_u32 {sJF}, {sJF}, {FW}")
        e("s_branch L_j1")
        e("L_g1:")
        e(f"s_sub_u32 {sJP}, {sJOB}, 6\ns_cmp_ge_u32 {sJP}, 6\ns_cselect_b32 {sT0}, 1, 0\ns_lshl_b32 {sJJ}, {sXC}, 1\ns_add_u32 {sJJ}, {sJJ}, {sT0}")
        e(f"s_mul_i32 {sT0}, {sT0}, 6\ns_sub_u32 {sJP}, {sJP}, {sT0}")
        e(f"s_mul_i32 {sT0}, {sJJ}, 192\ns_lshl_b32 {sT1}, {sJP}, 5\ns_add_u32 {sT0}, {sT0}, {sT1}")
        e(f"s_mul_i32 {sT1}, {sWAVE}, {160*3072}\ns_add_u32 {sT0}, {sT0}, {sT1}")
        self.srd(SA, 26, 640 * 3072)
        self.srd(SB, 28, 640 * 3072)
        e("v_mul_u32_u24 v61, 3072, v60\nv_lshl_add_u32 v61, v59, 4, v61")
        for T in range(5):
            e(f"buffer_load_dwordx4 {a_(8*T,4)}, v61, {SA}, {sT0} offen")
            e(f"buffer_load_dwordx4 {a_(8*T+4,4)}, v61, {SB}, {sT0} offen")
            if T < 4: e(f"s_add_u32 {sT0}, {sT0}, {32*3072}")
        e(f"s_lshl_b32 {sJF}, {sJJ}, 7\ns_lshl_b32 {sT0}, {sJP}, 2\ns_add_u32 {sJF}, {sJF}, {sT0}\ns_add_u32 {sJF}, {sJF}, {FW + 12}")
        e("s_branch L_j1")
        e("L_c1:")
        e(f"s_sub_u32 {sJP}, {sJOB}, 18")
        e(f"s_lshl_b32 {sJF}, {sXC}, 7\ns_lshl_b32 {sT0}, {sJP}, 2\ns_add_u32 {sJF}, {sJF}, {sT0}\ns_add_u32 {sJF}, {sJF}, {FW + 16*128}")
        e(f"s_mul_i32 {sT4}, {sXC}, 160\ns_lshl_b32 {sT1}, {sWAVE}, 1")
        e("v_lshrrev_b32 v48, 2, v56\nv_and_b32 v49, 3, v56")
        e(f"s_cmp_ge_u32 {sJP}, 3\ns_cbranch_scc1 L_c1d")
        e(f"s_lshl_b32 {sJJ}, {sJP}, 3\ns_add_u32 {sJJ}, {sJJ}, {sT1}")
        e(f"s_cmp_ge_u32 {sJJ}, 20\ns_cbranch_scc1 L_j1")
        self.srd(SA, 22, 640 * 1280)
        for n in range(2):
            e(f"s_add_u32 {sT0}, {sJJ}, {n}\ns_lshl_b32 {sT0}, {sT0}, 2\nv_add_u32 v50, {sT0}, v48")
            e("v_mul_u32_u24 v51, 205, v50\nv_lshrrev_b32 v51, 10, v51\nv_mul_u32_u24 v52, 5, v51\nv_sub_u32 v52, v50, v52")
            e("v_and_b32 v53, 1, v52\nv_mul_u32_u24 v53, 20, v53\nv_lshrrev_b32 v54, 1, v52\nv_lshl_add_u32 v53, v54, 3, v53")
            e("v_mul_u32_u24 v51, 40, v51\nv_add_u32 v51, v51, v49\nv_cmp_gt_u32 vcc, 4, v52")
            for a2 in range(2):
                e(f"v_add_u32 v54, {4*a2}, v53\nv_cndmask_b32 v54, {16+20*a2}, v54, vcc\nv_add_u32 v54, v54, v51")
                e(f"v_mul_u32_u24 v54, 1280, v54\nv_lshl_add_u32 {v(44+2*n+a2)}, v57, 4, v54")
        e("s_branch L_c1l")
        e("L_c1d:")
        e(f"s_sub_u32 {sJJ}, {sJP}, 3\ns_lshl_b32 {sJJ}, {sJJ}, 3\ns_add_u32 {sJJ}, {sJJ}, {sT1}")
        self.srd(SA, 30, 1536 * 1280)
        e(f"s_lshl_b32 {sT0}, {sJJ}, 5\nv_lshl_add_u32 v50, v48, 3, v49\nv_add_u32 v50, {sT0}, v50")
        e("v_mul_u32_u24 v50, 1280, v50\nv_lshl_add_u32 v44, v57, 4, v50")
        e(f"v_add_u32 v45, {4*1280}, v44\nv_add_u32 v46, {32*1280}, v44\nv_add_u32 v47, {36*1280}, v44")
        e("L_c1l:")
        for n in range(2):
            for a2 in range(2):
                for grp in range(3):
                    e(f"buffer_load_dwordx4 {a_(4*(6*n+3*a2+grp),4)}, {v(44+2*n+a2)}, {SA}, {sT4} offen offset:{64*grp}")
        e("L_j1:")
        self.stamp("p0 issued")
        e(f"s_mul_i32 {sT0}, {sJ}, {160*1024}\ns_add_u32 {sT0}, {sT0}, {sW4K}\ns_add_u32 {sWQ}, {sT0}, {WQ}")
        e(f"s_mul_i32 {sT0}, {sC}, {100*1024}\ns_add_u32 {sT0}, {sT0}, {sW4K}\ns_add_u32 {sWO}, {sT0}, {WO}")
        e(f"s_mul_i32 {sT0}, {sJ}, {240*1024}\ns_add_u32 {sT0}, {sT0}, {sW4K}\ns_add_u32 {sWG}, {sT0}, {WGU}")
        e(f"s_mul_i32 {sT0}, {sC}, {240*1024}\ns_add_u32 {sT0}, {sT0}, {sW4K}\ns_add_u32 {sWD}, {sT0}, {WD}")
        e(f"s_lshl_b32 {sT4}, {sI}, 2\ns_add_u32 {sT4}, {sT4}, {sWAVE}")
        e(f"s_mul_i32 {sT0}, {sT4}, 40960\ns_add_u32 {sXLD}, {sT0}, {LB0}")
        e(f"s_mul_i32 {sT1}, {sJ}, 2560\ns_add_u32 {sOST}, {sT0}, {sT1}\ns_add_u32 {sOST}, {sOST}, {LB0 + L_O}")
        e(f"s_lshl_b32 {sT0}, {sT4}, 11\ns_add_u32 {sSTLD}, {sT0}, {LB0}")
        e(f"s_mul_i32 {sT0}, {sT4}, 98304\ns_mul_i32 {sT1}, {sJ}, 6144\ns_add_u32 {sT0}, {sT0}, {sT1}\ns_add_u32 {sHST}, {sT0}, {LB0 + L_H}")
        e(f"s_mul_i32 {sT0}, {sT5}, 40960\ns_mul_i32 {sT1}, {sC}, 5120\ns_add_u32 {sXST}, {sT0}, {sT1}\ns_add_u32 {sXST}, {sXST}, {LB0}")
        e(f"s_mul_i32 {sT1}, {sKH}, 20480\ns_add_u32 {sOLD}, {sT0}, {sT1}\ns_add_u32 {sOLD}, {sOLD}, {LB0 + L_O}")
        e(f"s_lshl_b32 {sT0}, {sT5}, 11\ns_lshl_b32 {sT1}, {sC}, 8\ns_add_u32 {sSTST}, {sT0}, {sT1}\ns_add_u32 {sSTST}, {sSTST}, {LB0}")
        e(f"s_mul_i32 {sT0}, {sT5}, 98304\ns_mul_i32 {sT1}, {sKH}, 49152\ns_add_u32 {sT0}, {sT0}, {sT1}\ns_add_u32 {sHLD}, {sT0}, {LB0 + L_H}")
        e(f"s_lshl_b32 {sT0}, {sJ}, 16\ns_lshl_b32 {sT1}, {sWAVE}, 10\ns_add_u32 {sPLD}, {sT0}, {sT1}\ns_add_u32 {sPLD}, {sPLD}, {LB0 + L_PART}")
        e(f"s_lshl_b32 {sT1}, {sI}, 12\ns_add_u32 {sT0}, {sT0}, {sT1}\ns_mul_i32 {sT1}, {sKH}, 1920\ns_add_u32 {sT0}, {sT0}, {sT1}")
        e(f"s_add_u32 {sPST}, {sT0}, {LB0 + L_PART}")
        e(f"s_lshl_b32 {sT0}, {sI}, 7\ns_add_u32 {sFI}, {sT0}, {LB0 + L_FL}\ns_lshl_b32 {sT0}, {sJ}, 7\ns_add_u32 {sFJ}, {sT0}, {LB0 + L_FL}")
        e(f"v_add_u32 {vL16H}, 0x10000, {vL16}\ns_lshl_b32 {sT0}, {sKH}, 10\nv_add_u32 {vWK}, {sT0}, {vL16}\nv_add_u32 {vWKH}, 0x10000, {vWK}")
        e("v_lshlrev_b32 v61, 4, v56\nv_lshl_add_u32 v55, v57, 9, v61")
        e(f"s_lshl_b32 {sT0}, {sKH}, 8\nv_add_u32 {vK}, {sT0}, v55\ns_xor_b32 {sT1}, {sT0}, 256\nv_add_u32 {vS}, {sT1}, v55")
        e(f"v_lshrrev_b32 v54, 1, v57\nv_and_b32 v53, 1, v57\nv_lshl_add_u32 v52, v54, 9, v61\nv_lshl_add_u32 v52, v53, 3, v52")
        e(f"s_add_u32 {sT0}, {sT0}, 4096\nv_add_u32 {vXS2}, {sT0}, v52")
        e(f"v_lshlrev_b32 v52, 2, v56\nv_lshl_add_u32 v52, v54, 6, v52\ns_lshl_b32 {sT0}, {sKH}, 7\nv_add_u32 {vSS}, {sT0}, v52")
        e(f"v_lshlrev_b32 v52, 2, v56\nv_lshl_add_u32 v52, v59, 6, v52\nv_lshl_add_u32 {vSL}, v53, 7, v52")
        e(f"s_lshl_b32 {sT0}, {sWAVE}, 12\ns_add_u32 {sT0}, {sT0}, {SCR}\nv_lshlrev_b32 v52, 7, v58\nv_lshl_add_u32 v52, v59, 14, v52")
        e(f"v_and_b32 v51, 7, v58\nv_lshl_add_u32 v52, v51, 4, v52\nv_add_u32 {vTW}, {sT0}, v52")
        e("v_lshrrev_b32 v51, 2, v56\nv_and_b32 v50, 3, v56\nv_lshl_add_u32 v50, v53, 2, v50")
        e(f"s_lshl_b32 {sT0}, {sKH}, 14\ns_add_u32 {sT0}, {sT0}, {SCR}\ns_mul_i32 {sT1}, {sTH}, 5")
        e(f"v_lshl_add_u32 v49, v59, 3, v51\nv_lshlrev_b32 v49, 7, v49\nv_add_u32 v49, {sT0}, v49")
        e(f"v_add_u32 v48, {sT1}, v50\nv_min_u32 v50, 5, v50\nv_add_u32 v50, 10, v50")
        for (src, d0, d1) in (("v48", vTA0, vTA1), ("v50", vTB0, vTB1)):
            e(f"v_lshrrev_b32 v47, 1, {src}\nv_xor_b32 v47, v47, v51\nv_and_b32 v46, 1, {src}\nv_lshlrev_b32 v46, 3, v46")
            e(f"v_lshl_add_u32 v46, v47, 4, v46\nv_add_u32 {d0}, v49, v46\nv_xor_b32 v46, 64, v46\nv_add_u32 v46, 512, v46\nv_add_u32 {d1}, v49, v46")
        e(f"v_mov_b32 v46, {BIG}\nv_lshlrev_b32 v47, 4, v58\nv_cmp_gt_u32 vcc, 24, v58\nv_cndmask_b32 v47, v46, v47, vcc")
        e(f"v_lshl_add_u32 {vP}, v59, 3, v47\nv_cmp_gt_u32 vcc, 24, {vLANE}\nv_cndmask_b32 {vP2}, v46, v47, vcc")
        e(f"s_mul_i32 {sT0}, {sTH}, 768\nv_add_u32 {vP}, {sT0}, {vP}\ns_lshl_b32 {sT0}, {sTH}, 3\ns_add_u32 {sT0}, {sT0}, 1536\nv_add_u32 {vP2}, {sT0}, {vP2}")
        e(f"v_lshl_add_u32 {vR}, v57, 12, v61")
        e(f"s_lshl_b32 {sT0}, {sWAVE}, 10\ns_add_u32 {sT0}, {sT0}, {SCR}\nv_lshl_add_u32 v47, v57, 3, v61\nv_add_u32 {vI}, {sT0}, v47")
        e(f"v_lshrrev_b32 v47, 3, v58\nv_and_b32 v46, 3, v58\nv_lshl_add_u32 v47, v47, 2, v46\nv_mul_u32_u24 v46, 120, v59")
        e(f"v_add_u32 v45, v46, v47\nv_lshlrev_b32 v45, 4, v45\nv_add_u32 {vA0}, {SCR}, v45")
        e(f"v_add_u32 v47, 16, v47\nv_min_u32 v47, 23, v47\nv_add_u32 v45, v46, v47\nv_lshlrev_b32 v45, 4, v45\nv_add_u32 {vA1}, {SCR}, v45")
        e(f"v_lshlrev_b32 v47, 4, v58\nv_lshl_add_u32 {vO2}, v59, 3, v47")
        e(f"s_lshl_b32 {sT0}, {sJ}, 2\nv_mov_b32 {vFJ4}, {sT0}\ns_lshl_b32 {sT0}, {sI}, 2\nv_mov_b32 {vFI4}, {sT0}\nv_lshlrev_b32 {vL4}, 2, {vLANE}")
        e(f"s_mul_i32 {sT0}, {sWAVE}, 5120\ns_add_u32 {sT0}, {sT0}, {SCR}\nv_add_u32 {vRedW}, {sT0}, {vL16}")
        e(f"s_xor_b32 {sT0}, {sWAVE}, 2\ns_mul_i32 {sT0}, {sT0}, 5120\ns_add_u32 {sT0}, {sT0}, {SCR}\nv_add_u32 {vRedR}, {sT0}, {vL16}")
        self.make_sel(ASEL, "v56", 46)
        for q in range(40): e(f"v_accvgpr_write_b32 {a_(AF+q)}, 0")
        e(f"s_add_u32 {sT0}, {sFI}, {FX}\nv_add_u32 v43, {sT0}, {vL4}")
        e(f"s_lshl_b32 {sT0}, {sJ}, 7\ns_add_u32 {sT0}, {sT0}, {FW - 64}\nv_add_u32 v46, {sT0}, {vL4}\nv_cmp_lt_u32 vcc, 15, {vLANE}\nv_cndmask_b32 v43, v43, v46, vcc")
        e(f"s_lshl_b32 {sT0}, {sC}, 7\ns_add_u32 {sT0}, {sT0}, {FW + 16*128 - 100}\nv_add_u32 v46, {sT0}, {vL4}\nv_cmp_lt_u32 vcc, 24, {vLANE}\nv_cndmask_b32 v43, v43, v46, vcc")
        self.stamp("p0 setup")
        e("s_waitcnt vmcnt(0)")
        self.stamp("p0 loaded")
        e(f"v_readfirstlane_b32 {sNONCE}, {vNON}")
        for q in range(10):
            src = 224 + q if q < 8 else 62 + (q - 8)
            e(f"v_lshlrev_b32 {v(RES+2*q)}, 16, {v(src)}\nv_and_b32 {v(RES+2*q+1)}, 0xffff0000, {v(src)}")
        e(f"s_mul_i32 {sNONCE}, {sNONCE}, 0x9E3779B1\ns_add_u32 {sNONCE}, {sNONCE}, 0x7F4A7C15\nv_mov_b32 {vNON}, {sNONCE}")
        self.publish_x(L_XIN, L_STIN, "p0")
        e(f"s_cmp_lt_u32 {sJOB}, 6\ns_cbranch_scc1 L_q2\ns_cmp_lt_u32 {sJOB}, 18\ns_cbranch_scc1 L_g2\ns_cmp_lt_u32 {sJOB}, 27\ns_cbranch_scc1 L_c2")
        e("s_branch L_j2")
        e("L_q2:")
        e("v_lshrrev_b32 v52, 3, v58\nv_bfe_u32 v53, v58, 2, 1\nv_and_b32 v54, 3, v58")
        e(f"s_cmp_eq_u32 {sJP}, 1\ns_cbranch_scc1 L_q2v")
        e("v_lshrrev_b32 v51, 2, v56\nv_lshl_add_u32 v51, v59, 3, v51\nv_mul_u32_u24 v51, 40, v51")
        e(f"s_lshl_b32 {sT0}, {sWAVE}, 11\ns_add_u32 {sT0}, {sT0}, {SCR}\nv_add_u32 v51, {sT0}, v51")
        e("v_bfe_u32 v50, v56, 1, 1\nv_and_b32 v49, 1, v57\nv_lshl_add_u32 v50, v49, 1, v50\nv_lshl_add_u32 v50, v50, 3, v51\nv_add_u32 v51, 32, v51")
        PFQ = 160 + 64
        for nu in range(2):
            for kp in range(3):
                for u in range(2):
                    e(f"ds_read_b64_tr_b16 {a_(64 + 4*(3*nu+kp) + 2*u, 2)}, {'v50' if nu == 0 else 'v51'} offset:{(16*kp+4*u)*40}")
        e("s_waitcnt lgkmcnt(0)")
        for kp in range(3):
            for u in range(2):
                m = []
                for g in range(2):
                    hd = (16 * kp + 8 * g + 4 * u) // 20
                    m.append({0: 0x0F0F0F0F, 1: 0xF0F0F0F0, 2: 0}[hd])
                e(f"s_mov_b32 {sMlo}, {hex(m[0])}\ns_mov_b32 {sMhi}, {hex(m[1])}")
                for nu in range(2):
                    for h in range(2):
                        idx = 4 * (3 * nu + kp) + 2 * u + h
                        tmp = 46 + (2 * nu + h)
                        e(f"v_accvgpr_read_b32 {v(tmp)}, {a_(64+idx)}")
                for nu in range(2):
                    for h in range(2):
                        idx = 4 * (3 * nu + kp) + 2 * u + h
                        tmp = 46 + (2 * nu + h)
                        e(f"v_cndmask_b32 {v(tmp)}, 0, {v(tmp)}, {sM}\nv_accvgpr_write_b32 {a_(96+idx)}, {v(tmp)}")
        e("s_branch L_q2m")
        e("L_q2v:")
        e("v_mul_u32_u24 v51, 20, v53\nv_lshl_add_u32 v51, v52, 2, v51\nv_add_u32 v51, v51, v54\nv_lshlrev_b32 v50, 3, v59\nv_sub_u32 v51, v51, v50")
        for nu in range(2):
            for kp in range(3):
                e(f"v_add_u32 v50, {16*nu - 16*kp}, v51")
                self.make_sel(32, "v50", 46)
                for q in range(4): e(f"v_accvgpr_write_b32 {a_(96 + 4*(3*nu+kp) + q)}, {v(32+q)}")
        e("L_q2m:")
        for T in range(5):
            for nu in range(2):
                D = 64 + 32 * T + 16 * nu
                for kp in range(3):
                    e(f"v_mfma_f32_32x32x16_bf16 {v(D,16)}, {a_(4*(3*T+kp),4)}, {a_(96+4*(3*nu+kp),4)}, {'0' if kp == 0 else v(D,16)}")
        for nu in range(2):
            e(f"s_mul_i32 {sT0}, {sJP}, 5\ns_add_u32 {sT0}, {sT0}, {4*nu}\nv_add_u32 v46, {sT0}, v52\nv_lshrrev_b32 v47, 2, v46\nv_and_b32 v46, 3, v46")
            e(f"v_lshlrev_b32 v46, 3, v46\nv_lshl_add_u32 v46, v53, 2, v46\nv_add_u32 v46, v46, v54\nv_lshl_add_u32 v46, v59, 5, v46\nv_lshlrev_b32 v46, 4, v46")
            e(f"v_mov_b32 v45, 120\nv_cmp_gt_u32 vcc, 3, v47\nv_cndmask_b32 v47, v45, v47, vcc\nv_lshl_add_u32 {v(48+nu)}, v47, 10, v46")
            e(f"v_mov_b32 v46, 3072\nv_mov_b32 v45, 1024\nv_cndmask_b32 {v(50+nu)}, v45, v46, vcc")
            e(f"s_mul_i32 {sT0}, {sWAVE}, 10\nv_mul_u32_u24 v46, {sT0}, {v(50+nu)}\nv_add_u32 {v(48+nu)}, {v(48+nu)}, v46")
        e(f"v_mov_b32 v46, {BIG}\nv_cmp_gt_u32 vcc, 8, v58\nv_cndmask_b32 v49, v46, v49, vcc")
        for nu in range(2):
            t = 32 + 4 * nu
            for T in range(5):
                D = 64 + 32 * T + 16 * nu
                for q in range(8):
                    tt = t + 2 * (q & 1)
                    if T == 0 and q < 2: e(f"v_pk_add_f32 {v(tt,2)}, {v(D+2*q,2)}, 0")
                    else: e(f"v_pk_add_f32 {v(tt,2)}, {v(tt,2)}, {v(D+2*q,2)}")
            e(f"v_pk_add_f32 {v(t,2)}, {v(t,2)}, {v(t+2,2)}\nv_add_f32 {v(t)}, {v(t)}, {v(t+1)}")
        e("v_permlane32_swap_b32 v32, v36\nv_add_f32 v32, v32, v36")
        self.colmean_xwave(32)
        e("v_mov_b32 v34, v32\nv_permlane32_swap_b32 v32, v34")
        e(f"s_mul_i32 {sT0}, {sJJ}, {160*1024}\ns_add_u32 {sT0}, {sT0}, {WQ}")
        for T in range(5):
            for u in range(2):
                for nu in range(2):
                    D = 64 + 32 * T + 16 * nu + 8 * u
                    for q in range(4):
                        e(f"v_pk_add_f32 {v(D+2*q,2)}, {v(D+2*q,2)}, {v(32+2*nu,2)} op_sel_hi:[1,0]")
                    for q in range(4):
                        e(f"v_cvt_pk_bf16_f32 {v(D+q)}, {v(D+2*q)}, {v(D+2*q+1)}")
                    e(f"buffer_store_dwordx4 {v(D,4)}, {v(48+nu)}, {WS}, {sT0} offen sc1")
                    e(f"v_add_u32 {v(48+nu)}, {v(48+nu)}, {v(50+nu)}")
        e("s_branch L_j2")
        e("L_g2:")
        e("v_lshrrev_b32 v52, 3, v58\nv_bfe_u32 v53, v58, 2, 1\nv_and_b32 v54, 3, v58\nv_and_b32 v51, 1, v52\nv_lshl_add_u32 v51, v51, 2, v54")
        e("v_cmp_eq_u32 vcc, v53, v59\nv_cndmask_b32 v51, -2, v51, vcc\nv_cmp_gt_u32 vcc, 2, v52\nv_cndmask_b32 v50, -2, v51, vcc\nv_mov_b32 v49, -2\nv_cndmask_b32 v51, v51, v49, vcc")
        self.make_sel(32, "v50", 46)
        self.make_sel(36, "v51", 46)
        for T in range(5):
            D = 64 + 16 * T
            e(f"v_mfma_f32_32x32x16_bf16 {v(D,16)}, {a_(8*T,4)}, v[32:35], 0")
            e(f"v_mfma_f32_32x32x16_bf16 {v(D,16)}, {a_(8*T+4,4)}, v[36:39], {v(D,16)}")
        e(f"s_cmp_lt_u32 {sJP}, 5\ns_cselect_b32 {sT1}, 2, 1\ns_mov_b32 {sT2}, 195\ns_cselect_b32 {sT2}, 117, {sT2}")
        e(f"s_cmp_lt_u32 {sJP}, 3\ns_cselect_b32 {sT1}, 3, {sT1}\ns_cselect_b32 {sT2}, 0, {sT2}\ns_add_u32 {sT2}, {sT2}, {sJP}")
        e(f"s_mul_i32 {sT0}, {sWAVE}, 10\ns_mul_i32 {sT0}, {sT0}, {sT1}\ns_add_u32 {sT2}, {sT2}, {sT0}\ns_lshl_b32 {sT2}, {sT2}, 10\ns_lshl_b32 {sT1}, {sT1}, 10")
        e(f"s_mul_i32 {sT0}, {sJJ}, {240*1024}\ns_add_u32 {sT0}, {sT0}, {sT2}\ns_add_u32 {sT0}, {sT0}, {WGU}")
        self.pk_sum(64, 80, 32)
        e("v_mov_b32 v33, v32\nv_permlane32_swap_b32 v32, v33\nv_add_f32 v32, v32, v33")
        self.colmean_xwave(32)
        for T in range(5):
            for u in range(2):
                D = 64 + 16 * T + 8 * u
                for q in range(4):
                    e(f"v_pk_add_f32 {v(D+2*q,2)}, {v(D+2*q,2)}, v[32:33] op_sel_hi:[1,0]")
                for q in range(4):
                    e(f"v_cvt_pk_bf16_f32 {v(D+q)}, {v(D+2*q)}, {v(D+2*q+1)}")
                e(f"buffer_store_dwordx4 {v(D,4)}, {vL16}, {WS}, {sT0} offen sc1")
                e(f"s_add_u32 {sT0}, {sT0}, {sT1}")
        e("s_branch L_j2")
        e("L_c2:")
        e(f"s_cmp_ge_u32 {sJP}, 3\ns_cselect_b32 {sT1}, 24, 10\ns_cselect_b32 {sT2}, 48, 20\ns_cmp_ge_u32 {sJJ}, {sT2}\ns_cbranch_scc1 L_j2")
        e("v_lshrrev_b32 v52, 2, v56\nv_and_b32 v53, 3, v56\nv_cmp_eq_u32 vcc, v52, v57\nv_cndmask_b32 v50, -2, v53, vcc\nv_add_u32 v51, 4, v53\nv_cndmask_b32 v51, -2, v51, vcc")
        e("v_lshrrev_b32 v52, 3, v56\nv_and_b32 v53, 7, v56\nv_cmp_eq_u32 vcc, v52, v57\nv_cndmask_b32 v49, -2, v53, vcc")
        self.make_sel(32, "v50", 46)
        self.make_sel(36, "v51", 46)
        self.make_sel(52, "v49", 46)
        for n in range(2):
            for t in range(5):
                for a2 in range(2):
                    D = 64 + 40 * n + 8 * t + 4 * a2
                    P = (32, 36, 32, 36, 52)[t]
                    e(f"v_mfma_f32_16x16x32_bf16 {v(D,4)}, {a_(4*(6*n+3*a2+t//2),4)}, {v(P,4)}, 0")
        e(f"s_cmp_ge_u32 {sJP}, 3\ns_mov_b32 {sT2}, {100*1024}\ns_cselect_b32 {sT2}, {240*1024}, {sT2}\ns_mov_b32 {sT3}, {WO}\ns_cselect_b32 {sT3}, {WD}, {sT3}")
        e(f"s_mul_i32 {sT2}, {sT2}, {sXC}\ns_add_u32 {sT2}, {sT2}, {sT3}")
        for n in range(2):
            e(f"s_add_u32 {sT0}, {sJJ}, {n}\ns_cmp_ge_u32 {sT0}, {sT1}\ns_cselect_b32 {sT3}, {sT1}, 0\ns_cselect_b32 {sT4}, 1, 0")
            e(f"s_sub_u32 {sT0}, {sT0}, {sT3}\ns_mul_i32 {sT0}, {sT0}, 10\ns_add_u32 {sT0}, {sT0}, {sT4}\ns_lshl_b32 {sT0}, {sT0}, 10\ns_add_u32 {sT0}, {sT0}, {sT2}")
            for t in range(5):
                D = 64 + 40 * n + 8 * t
                for q in range(4):
                    e(f"v_cvt_pk_bf16_f32 {v(D+q)}, {v(D+2*q)}, {v(D+2*q+1)}")
                e(f"buffer_store_dwordx4 {v(D,4)}, {vL16}, {WS}, {sT0} offen offset:{2048*(t&1)} sc1")
                if t & 1: e(f"s_add_u32 {sT0}, {sT0}, 4096")
        e("L_j2:")
        self.stamp("p0 stored")
        e("s_waitcnt vmcnt(0)\ns_barrier")
        self.stamp("p0 drained")
        def f():
            e(f"s_add_u32 {sT0}, {sFI}, {FX}\nv_mov_b32 v44, 0")
            self.flag(vFJ4, sT0)
            self.flag("v44", sJF)
            self.poll("v43", "0", (1 << 34) - 1)
        self.w0(f)
        e("s_barrier")
        self.a.vm = []; self.a.lg = []
        self.ring.reset()
        for g in range(3): self.ring.issue(g)

    def colmean_xwave(self, r):
        e = self.e
        e(f"s_lshl_b32 {sT3}, {sWAVE}, 8\ns_add_u32 {sT3}, {sT3}, {SCR + 8192}\nv_add_u32 v46, {sT3}, {vL4}\nv_add_u32 v47, {SCR + 8192}, {vL4}")
        e(f"ds_write_b32 v46, {v(r)}\ns_waitcnt lgkmcnt(0)\ns_barrier")
        e(f"ds_read2st64_b32 v[40:41], v47 offset0:0 offset1:1\nds_read2st64_b32 v[44:45], v47 offset0:2 offset1:3\ns_waitcnt lgkmcnt(0)")
        e(f"v_pk_add_f32 v[40:41], v[40:41], v[44:45]\nv_add_f32 {v(r)}, v40, v41\nv_mul_f32 {v(r)}, 0xbacccccd, {v(r)}")

    def p1(self):
        e, a, r = self.e, self.a, self.ring
        self.stamp("P1 start")
        self.gemm32_begin(P1POS, 160, L_XIN)
        self.gemm32_pass(0, [ACC, ACC+16, ACC+32], True,
                         dma={7: 3, 22: 4, 37: 5, 52: 6, 67: 7, 91: 8, 106: 9}, stoff=L_STIN)
        self.stamp("passA end")
        a.wait(vm="st")
        self.stats()
        e(f"v_mul_f32 {v(C2)}, {hex(LOG2E)}, {v(RS)}\nv_mul_f32 {v(C2+1)}, {hex(LOG2E | 0x80000000)}, {v(RS)}")
        PK = 192
        for t in self.softmax_ops(ACC, lambda s, q: 10 * s + q, PK): e(t)
        for q in range(10):
            e(f"v_pk_mul_f32 {v(ACC+20+2*q,2)}, {v(ACC+20+2*q,2)}, {v(RS,2)} op_sel_hi:[1,0]")
        for q in range(10):
            e(f"v_cvt_pk_bf16_f32 {v(PK+20+q)}, {v(ACC+20+2*q)}, {v(ACC+21+2*q)}")
        e(f"v_mov_b32 {v(PK+30)}, 0x3f80\nv_mov_b32 {v(PK+31)}, 0")
        for c in range(8):
            if c == 0: e(f"ds_write_b128 {vTW}, {v(PK,4)}", "tw")
            else: e(f"v_xor_b32 {v(176+c)}, {16*c}, {vTW}\nds_write_b128 {v(176+c)}, {v(PK+4*c,4)}", "tw")
        a.wait(lg="tw")
        r.barrier()
        for ks in range(8):
            e(f"ds_read_b64_tr_b16 {v(128+4*ks,2)}, {vTA0} offset:{2048*ks}", ("tr", ks))
            e(f"ds_read_b64_tr_b16 {v(130+4*ks,2)}, {vTA1} offset:{2048*ks}", ("tr", ks))
            e(f"ds_read_b64_tr_b16 {v(192+4*ks,2)}, {vTB0} offset:{2048*ks}", ("tr", ks))
            e(f"ds_read_b64_tr_b16 {v(194+4*ks,2)}, {vTB1} offset:{2048*ks}", ("tr", ks))
            if ks >= 2:
                k2 = ks - 2
                a.wait(lg=("tr", k2))
                e(f"v_mfma_f32_32x32x16_bf16 v[160:175], {v(128+4*k2,4)}, {v(192+4*k2,4)}, {'0' if k2 == 0 else 'v[160:175]'}")
        for k2 in (6, 7):
            a.wait(lg=("tr", k2))
            e(f"v_mfma_f32_32x32x16_bf16 v[160:175], {v(128+4*k2,4)}, {v(192+4*k2,4)}, v[160:175]")
        fill = []
        for q in range(6):
            fill.append(f"v_cvt_pk_bf16_f32 {v(176+q)}, {v(160+2*q)}, {v(161+2*q)}")
        fill.append((f"buffer_store_dwordx2 v[176:177], {vP}, {WS}, {sPST} offen sc1", "part"))
        fill.append((f"buffer_store_dwordx2 v[178:179], {vP}, {WS}, {sPST} offen offset:384 sc1", "part"))
        fill.append((f"buffer_store_dwordx2 v[180:181], {vP2}, {WS}, {sPST} offen sc1", "part"))
        self.stamp("kv mfma")
        self.gemm32_pass(120, [ACC+48], False, dma={8: 11, 13: 12, 18: 13, 23: 14, 28: 15, 34: 16}, fill=fill, fill_rate=3, fill_start=1)
        self.stamp("passB end")
        a.wait(vm="part")
        r.barrier()
        def f():
            e(f"s_add_u32 {sT0}, {sFJ}, {F1}")
            self.flag(vFI4, sT0)
        self.w0(f)
        PQ = 192
        order = lambda s, q: (8 * s + q) if q < 8 else (16 + 2 * s + q - 8)
        for t in self.softmax_ops(ACC + 40, order, PQ): e(t)
        self.stamp("q softmax")
        self.sync(sFJ, F1, None, None, send=False)
        self.stamp("S1 done")
        for p in range(4):
            if p == 0: e(f"s_mov_b32 {sLD}, {sPLD}")
            else: e(f"s_add_u32 {sLD}, {sLD}, 16384")
            for q in range(4):
                e(f"buffer_load_dwordx4 {a_(16*p+4*q,4)}, {vR}, {WS}, {sLD} offen offset:{256*q} sc1", ("pl", p, q))
        r.issue(17); r.issue(18)
        for p in range(4):
            for q in range(4):
                a.wait(vm=("pl", p, q))
                e(f"v_mfma_f32_16x16x32_bf16 {v(128+4*q,4)}, {v(ASEL,4)}, {a_(16*p+4*q,4)}, {'0' if p == 0 else v(128+4*q,4)}")
        for q in range(4):
            e(f"v_cvt_pk_bf16_f32 {v(144+2*q)}, {v(128+4*q)}, {v(129+4*q)}\nv_cvt_pk_bf16_f32 {v(145+2*q)}, {v(130+4*q)}, {v(131+4*q)}")
        e("s_mov_b64 exec, 0xffffffff")
        for q in range(4):
            e(f"ds_write_b64 {vI}, {v(144+2*q,2)} offset:{256*q}", "img")
        e("s_mov_b64 exec, -1")
        a.wait(lg="img")
        r.barrier()
        e("s_mov_b32 exec_lo, 0x0f0f0f0f\ns_mov_b32 exec_hi, 0xf0f0f0f0")
        for kap in range(5):
            for mu in range(2):
                e(f"ds_read_b128 {a_(AF+20*mu+4*kap,4)}, {vA1 if mu else vA0} offset:{384*kap}", ("af", kap, mu))
        e("s_mov_b64 exec, -1")
        for kap in range(5):
            for mu in (1, 0):
                a.wait(lg=("af", kap, 1))
                N = ACC + 16 * mu
                e(f"v_mfma_f32_32x32x16_bf16 {v(N,16)}, {a_(AF+20*mu+4*kap,4)}, {v(PQ+4*kap,4)}, {'0' if kap == 0 else v(N,16)}")
        e(f"v_add_f32 {v(RR)}, 0x358637bd, {v(ACC+20)}\nv_rcp_f32 {v(RR)}, {v(RR)}")
        for q in (8, 9, 0, 1, 2, 3, 4, 5, 6, 7):
            e(f"v_pk_mul_f32 {v(ACC+2*q,2)}, {v(ACC+2*q,2)}, {v(RR,2)} op_sel_hi:[1,0]")
        for q in range(10):
            e(f"v_cvt_pk_bf16_f32 {v(128+q)}, {v(ACC+2*q)}, {v(ACC+2*q+1)}")
        e(f"buffer_store_dwordx4 v[128:131], {vL16}, {WS}, {sOST} offen sc1", "o")
        e(f"buffer_store_dwordx4 v[132:135], {vL16}, {WS}, {sOST} offen offset:1024 sc1", "o")
        e(f"buffer_store_dwordx2 v[136:137], {vO2}, {WS}, {sOST} offen offset:2048 sc1", "o")
        self.stamp("o stored")
        self.sync(sFI, F2, vFJ4, "o")

    def p2(self):
        self.stamp("P2 start")
        self.gemm16(P2POS, 10, sOLD, {31: 19, 41: 20})
        self.publish_x(L_XMID, L_STMID, "x1")
        self.stamp("x1 stored")
        self.sync(sFI, F3, vFJ4, "x1", pre=(21, 22, 23), post=(24, 25))

    def h_ops(self, acc, t, T):
        L = []
        for q in range(8): L.append(f"v_max_f32 {v(acc+q)}, 0, {v(acc+q)}")
        for q in range(4): L.append(f"v_pk_mul_f32 {v(acc+8+2*q,2)}, {v(acc+8+2*q,2)}, {v(C2,2)} op_sel_hi:[1,0]")
        for q in range(4): L.append(f"v_pk_mul_f32 {v(acc+2*q,2)}, {v(acc+2*q,2)}, {v(acc+8+2*q,2)}")
        for q in range(4): L.append(f"v_cvt_pk_bf16_f32 {v(T+q)}, {v(acc+2*q)}, {v(acc+2*q+1)}")
        if t == 4: L.append(f"s_add_u32 {sT2}, {sHST}, 4096")
        L.append((f"buffer_store_dwordx4 {v(T,4)}, {vL16}, {WS}, {sHST if t < 4 else sT2} offen offset:{(t%4)*1024} sc1", "h"))
        return L

    def p3(self):
        e, a, r = self.e, self.a, self.ring
        self.stamp("P3 start")
        self.gemm32_begin(P3POS, 240, L_XMID)
        self.gemm32_pass(0, [ACC, ACC+16, ACC+32], True, dma={37: 26, 67: 27, 97: 28}, stoff=L_STMID)
        self.stamp("P3 passA")
        a.wait(vm="st")
        self.stats()
        e(f"v_mul_f32 {v(C2)}, {v(RS)}, {v(RS)}")
        fill = []
        for t in range(3): fill += self.h_ops(ACC + 16 * t, t, 160 + 4 * t)
        self.gemm32_pass(120, [ACC+48, ACC+64], False,
                         dma={2: 29, 10: 30, 18: 31, 26: 32, 34: 33, 44: 34, 52: 35, 62: 36, 75: 37}, fill=fill, fill_rate=2)
        self.stamp("P3 passB")
        fill = []
        for t in (3, 4): fill += self.h_ops(ACC + 16 * t, t, 160 + 4 * t)
        self.gemm32_pass(200, [ACC+80], False, dma={14: 38, 30: 39}, fill=fill, fill_rate=2)
        for f in self.h_ops(ACC + 80, 5, 180):
            if isinstance(f, tuple): e(*f)
            else: e(f)
        self.stamp("h stored")
        self.sync(sFI, F4, vFJ4, "h", post=(40,))

    def p4(self):
        e, a, r = self.e, self.a, self.ring
        self.stamp("P4 start")
        self.gemm16(P4POS, 24, sHLD, {31: 41, 39: 42, 47: 43, 55: 44, 63: 45, 71: 46, 79: 47})
        self.stamp("P4 end")
        e(f"s_cmp_eq_u32 {sLAYER}, 1\ns_cbranch_scc1 L_final")
        self.publish_x(LSTRIDE + L_XIN, LSTRIDE + L_STIN, "x2")
        self.sync(sFI, LSTRIDE + FX, vFJ4, "x2", pre=(48, 49, 50))
        for s in LAYER_REGS: e(f"s_add_u32 {s}, {s}, {LSTRIDE}")
        e(f"s_add_u32 {sLAYER}, {sLAYER}, 1\ns_branch L_layer")
        e("L_final:")
        P = 128
        for q in range(10):
            e(f"v_cvt_pk_bf16_f32 {v(P+q)}, {v(RES+2*q)}, {v(RES+2*q+1)}")
        e(f"buffer_store_dwordx4 {v(P,4)}, {vRM}, {OUT}, 0 offen")
        e(f"buffer_store_dwordx4 {v(P+4,4)}, {vRM}, {OUT}, 0 offen offset:64")
        e(f"buffer_store_dwordx2 {v(P+8,2)}, {vRM2}, {OUT}, 0 offen")
        e(f"s_or_b32 {sT0}, s2, {sWAVE}\ns_cmp_lg_u32 {sT0}, 0\ns_cbranch_scc1 L_done")
        e(f"v_mov_b32 {vT}, 0\ns_mov_b64 exec, 1\nbuffer_store_dword {vNON}, {vT}, {WS}, 0 offen sc1\ns_mov_b64 exec, -1")
        e("L_done:")
        self.stamp("end")
        if self.ts:
            e(f"s_lshl_b32 s91, s2, 9\ns_add_u32 s91, s91, {TSOFF + 504}\nv_mov_b32 {vT}, s94\nbuffer_store_dword {vT}, off, {WS}, s91")

    def build(self):
        a = self.a
        hdr = open(os.path.join(os.path.dirname(os.path.abspath(__file__)), "..", "cdna_kernels", NAME + ".s.ref")).read()
        head = [l for l in hdr.split("\n") if l.startswith(";") and "@launch" not in l and "Override" not in l and "grid=ceil" not in l]
        for l in head: a.raw(l)
        a.raw(f"; @launch grid=(256,1,1) block=(256,1,1) lds={LDS_BYTES}")
        a.raw('.amdgcn_target "amdgcn-amd-amdhsa--gfx950"\n.text')
        a.raw(f".globl {NAME}_kernel\n.p2align 8\n.type {NAME}_kernel,@function\n{NAME}_kernel:")
        self.prologue()
        a.e("s_nop 7\ns_nop 7")
        a.label("L_layer")
        head_vm = list(a.vm)
        self.p1(); self.p2(); self.p3(); self.p4()
        a.label("L_exit")
        a.e("s_endpgm")
        if self.cfg.get("codepf"): a.raw(".fill 1024, 4, 0xbf800000")
        a.raw('.section .rodata,"a"\n.p2align 6')
        a.raw(f".amdhsa_kernel {NAME}_kernel")
        a.raw("  .amdhsa_next_free_vgpr 512\n  .amdhsa_next_free_sgpr 102\n  .amdhsa_accum_offset 256\n  .amdhsa_group_segment_fixed_size 0")
        a.raw("  .amdhsa_kernarg_size 88\n  .amdhsa_user_sgpr_count 2\n  .amdhsa_user_sgpr_kernarg_segment_ptr 1\n  .amdhsa_system_sgpr_workgroup_id_x 1")
        a.raw(".end_amdhsa_kernel")
        return a.text()


if __name__ == "__main__":
    import argparse
    ap = argparse.ArgumentParser()
    ap.add_argument("-o", default=os.path.join(os.path.dirname(os.path.abspath(__file__)), "..", "cdna_kernels", NAME + ".s"))
    ap.add_argument("--ts", action="store_true")
    ap.add_argument("--map", default="R4")
    ap.add_argument("--cfg", default="{}")
    args = ap.parse_args()
    k = K(ts=args.ts, mapping=args.map, cfg=eval(args.cfg))
    txt = k.build()
    open(args.o, "w").write(txt)
    print("instructions:", k.a.ninstr, "nops:", k.a.nops, "ws bytes:", WS_SIZE)
```
